```python
import torch

def _softmax(x, axis=-1):
    return torch.softmax(x, dim=axis)
def _gelu(x):
    return torch.nn.functional.gelu(x, approximate="tanh")
def _silu(x):
    return torch.nn.functional.silu(x)
def _sigmoid(x):
    return torch.sigmoid(x)
def _layernorm(x, axis=-1, eps=1e-5):
    m = x.mean(dim=axis, keepdim=True)
    v = x.var(dim=axis, keepdim=True, unbiased=False)
    return (x - m) / torch.sqrt(v + eps)
def _scatter_add(tgt, idx, src, axis=0):
    return tgt.clone().index_add_(axis, idx, src)
def _segment_sum(src, seg, n):
    out = torch.zeros((n,) + src.shape[1:], dtype=src.dtype)
    return out.index_add_(0, seg, src)
def _pad(x, pw):
    flat = tuple(v for pair in reversed(pw) for v in pair)
    return torch.nn.functional.pad(x, flat)

kernel_name = 'gated_mix__linear_kernel_hedgehog__sliding_block__prompt'

def setup_inputs():

    _w = (lambda a: (lambda t: t.to(torch.bfloat16) if t.is_floating_point() else t)(torch.as_tensor(a)))
    def _A_setup():
        B, S, D, H = 1, 2048, 640, 32
        Dh = D // H
        return {
            "x": _w((lambda *s: torch.randn(*s, dtype=torch.bfloat16) * 0.05)(B, S, D)),
            "wqkv": _w((lambda *s: torch.randn(*s, dtype=torch.bfloat16) * 1.6)(D, 3 * D)),
            "w_phi": _w((lambda *s: torch.randn(*s, dtype=torch.bfloat16) * 1.6)(H, Dh, Dh) * (Dh ** -0.5)),
            "wo": _w((lambda *s: torch.randn(*s, dtype=torch.bfloat16) * 0.1)(D, D)),
        }
    _A_in = _A_setup()

    def _B_setup():
        B, S, D = 1, 2048, 640
        return {
            "x": _w((lambda *s: torch.randn(*s, dtype=torch.bfloat16) * 0.05)(B, S, D)),
            "wqkv": _w((lambda *s: torch.randn(*s, dtype=torch.bfloat16) * 0.8)(D, 3 * D)),
            "wo": _w((lambda *s: torch.randn(*s, dtype=torch.bfloat16) * 0.05)(D, D)),
        }
    _B_in = _B_setup()

    return {
        "A_x": _A_in["x"],
        "A_wqkv": _A_in["wqkv"],
        "A_w_phi": _A_in["w_phi"],
        "A_wo": _A_in["wo"],
        "B_x": _B_in["x"],
        "B_wqkv": _B_in["wqkv"],
        "B_wo": _B_in["wo"],
        "gate_w": _w((lambda *s: torch.randn(*s, dtype=torch.bfloat16) * 0.05)(640) * 16.0),
    }

def reference(A_x, A_wqkv, A_w_phi, A_wo, B_x, B_wqkv, B_wo, gate_w):
    def _A_ref(x, wqkv, w_phi, wo):
        B, S, D = x.shape
        H = 32; Dh = D // H
        qkv = (lambda x, *d: x.permute(*d))((x @ wqkv).reshape(B, S, 3, H, Dh), 2, 0, 3, 1, 4)
        q, k, v = qkv[0], qkv[1], qkv[2]
        pq = torch.einsum("bhsd,hdf->bhsf", q, w_phi)
        pk = torch.einsum("bhsd,hdf->bhsf", k, w_phi)
        phi_q = torch.concatenate([_softmax(pq, axis=-1), _softmax(-pq, axis=-1)], axis=-1)
        phi_k = torch.concatenate([_softmax(pk, axis=-1), _softmax(-pk, axis=-1)], axis=-1)
        kv = torch.einsum("bhsf,bhsd->bhfd", phi_k, v)
        z  = torch.einsum("bhsf->bhf", phi_k)
        num = torch.einsum("bhqf,bhfd->bhqd", phi_q, kv)
        den = torch.einsum("bhqf,bhf->bhq", phi_q, z)[..., None] + 1e-6
        o = num / den
        return (lambda x, *d: x.permute(*d))(o, 0, 2, 1, 3).reshape(B, S, D) @ wo

    def _B_ref(x, wqkv, wo):
        B, S, D = x.shape
        H = 32; Dh = D // H; W = 256
        qkv = (lambda x, *d: x.permute(*d))((x @ wqkv).reshape(B, S, 3, H, Dh), 2, 0, 3, 1, 4)
        q, k, v = qkv[0], qkv[1], qkv[2]
        scores = torch.einsum("bhqd,bhkd->bhqk", q, k) * (Dh ** -0.5)
        idx = torch.arange(S)
        mask = (idx[:, None] - idx[None, :] >= 0) & (idx[:, None] - idx[None, :] < W)
        scores = torch.where(mask[None, None], scores, -1e9)
        p = _softmax(scores, axis=-1)
        o = torch.einsum("bhqk,bhkd->bhqd", p, v)
        return (lambda x, *d: x.permute(*d))(o, 0, 2, 1, 3).reshape(B, S, D) @ wo

    x = A_x
    g = _sigmoid((x * gate_w).sum(-1, keepdims=True))
    a = _A_ref(x, A_wqkv, A_w_phi, A_wo)
    b = _B_ref(x, B_wqkv, B_wo)
    return g * a + (1 - g) * b
```

```python
import re

def vr(a, n=1):
    return f"v{a}" if n == 1 else f"v[{a}:{a+n-1}]"
def sr(a, n=1):
    return f"s{a}" if n == 1 else f"s[{a}:{a+n-1}]"

_REG = re.compile(r"^(-|abs\()?([vsa])(?:(\d+)|\[(\d+):(\d+)\])\)?$")
def regs(tok):
    tok = tok.strip()
    if tok in ("vcc", "exec"): return {(tok, 0), (tok, 1)}
    if tok in ("vcc_lo", "exec_lo"): return {(tok[:-3], 0)}
    if tok in ("vcc_hi", "exec_hi"): return {(tok[:-3], 1)}
    if tok == "m0": return {("m0", 0)}
    m = _REG.match(tok)
    if not m: return set()
    k = m.group(2)
    if m.group(3) is not None: return {(k, int(m.group(3)))}
    return {(k, i) for i in range(int(m.group(4)), int(m.group(5)) + 1)}

TRANS = ("v_exp_", "v_log_", "v_rcp_", "v_rsq_", "v_sqrt_", "v_sin_", "v_cos_")
class Ins:
    def __init__(self, text):
        self.text = text
        t = text.split(";")[0].strip()
        self.label = None; self.op = None; self.directive = False
        self.w = set(); self.r = set()
        if not t: self.directive = True; return
        if t.endswith(":"): self.label = t[:-1]; return
        if t.startswith("."): self.directive = True; return
        parts = t.split(None, 1)
        op = self.op = parts[0]
        rest = parts[1] if len(parts) > 1 else ""
        ops = [o.strip() for o in re.split(r",(?![^\[]*\])", rest)] if rest else []
        mods = ""
        if ops:
            last = ops[-1].split(None, 1)
            ops[-1] = last[0]
            mods = last[1] if len(last) > 1 else ""
        self.ops = ops; self.mods = mods
        R = [regs(o) for o in ops]
        self.mfma = op.startswith("v_mfma")
        self.valu = op.startswith("v_") and not self.mfma
        self.salu = op.startswith("s_")
        self.vmem = op.startswith(("buffer_", "global_"))
        self.ds = op.startswith("ds_")
        self.trans = op.startswith(TRANS)
        self.permlane = op.startswith("v_permlane")
        self.dpp = "_dpp" in op or "row_" in mods or "quad_perm" in mods
        self.rdlane = op.startswith(("v_readlane", "v_readfirstlane"))
        self.ldsdma = self.vmem and ("lds" in mods.split() or "_lds_" in op)
        self.widestore = False; self.sdata = set()
        self.opsel = self.valu and ("dst_sel" in mods or ("op_sel:" in mods and not op.startswith("v_pk_")))
        if self.mfma:
            self.D, self.A, self.B, self.C = R[0], R[1], R[2], R[3]
            self.w = set(R[0]); self.r = R[1] | R[2] | R[3]
            self.passes = 8 if "32x32" in op else 4
            assert not any(x in op for x in ("2b", "4b", "16b", "f64", "x2_f32", "x4_f32", "f8f6f4"))
        elif self.valu:
            nd = 1
            if op.startswith(("v_add_co", "v_sub_co", "v_addc_co", "v_subb_co", "v_subrev_co", "v_mad_u64", "v_div_scale")): nd = 2
            for x in R[:nd]: self.w |= x
            for x in R[nd:]: self.r |= x
            if op.startswith(("v_fmac", "v_pk_fmac", "v_dot2c", "v_writelane")) or self.dpp or "dst_unused:UNUSED_PRESERVE" in mods: self.r |= R[0]
            if self.permlane: self.w |= R[1]; self.r |= R[0]
            assert not op.startswith("v_cmpx")
        elif self.vmem:
            if op.startswith(("buffer_wbl2", "buffer_inv")): pass
            elif self.ldsdma:
                for x in R: self.r |= x
                self.r |= {("m0", 0)}
            elif "_load" in op:
                self.w = set(R[0])
                for x in R[1:]: self.r |= x
            else:
                for x in R: self.r |= x
                di = 0 if op.startswith("buffer_") else 1
                if "atomic" in op and "sc0" in mods.split():
                    self.w = set(R[0])
                    if op.startswith("global_"): di = 2
                self.sdata = R[di]
                self.widestore = op.endswith(("x3", "x4")) or "cmpswap_x2" in op
        elif self.ds:
            if op.startswith(("ds_read", "ds_bpermute", "ds_permute", "ds_swizzle")) or "_rtn" in op:
                self.w = set(R[0])
                for x in R[1:]: self.r |= x
            else:
                for x in R: self.r |= x
        elif self.salu:
            if op.startswith(("s_cmp", "s_waitcnt", "s_nop", "s_barrier", "s_branch", "s_cbranch", "s_endpgm", "s_sleep", "s_setprio", "s_bitcmp")):
                for x in R: self.r |= x
            else:
                if R: self.w = set(R[0])
                for x in R[1:]: self.r |= x
                if "saveexec" in op: self.w |= regs("exec")
    def states(self):
        if self.op is None: return 0
        if self.op == "s_nop": return int(self.ops[0]) + 1
        return 1

def need(p, c):
    n = 0
    V = lambda s: {x for x in s if x[0] in "va"}
    S = lambda s: {x for x in s if x[0] in ("s", "vcc")}
    if p.valu:
        pv = V(p.w); ps = S(p.w)
        if c.mfma and pv & c.r: n = max(n, 2)
        if c.valu:
            if p.trans and not c.trans and pv & c.r: n = max(n, 1)
            if p.trans and c.trans and pv & c.r: n = max(n, 1)
            if (c.permlane or c.dpp) and pv & c.r: n = max(n, 2)
            if c.rdlane and pv & c.r: n = max(n, 1)
            if p.opsel and pv & (c.r | c.w): n = max(n, 1)
            if ps & c.r: n = max(n, 4 if (c.rdlane or c.op.startswith(("v_writelane", "v_div_fmas"))) else 2)
        if c.vmem and ps & c.r: n = max(n, 5)
        if c.salu and ps & c.r: n = max(n, 1)
        if p.trans and (c.vmem or c.ds) and pv & c.r: n = max(n, 1)
    if p.mfma:
        big = p.passes == 8
        if c.mfma:
            if p.D & c.C:
                if not (p.D == c.C and p.passes == c.passes): n = max(n, 10 if big else 6)
            if p.D & (c.A | c.B): n = max(n, 12 if big else 8)
            if p.D & c.D and not (p.D == c.C): n = max(n, 10 if big else 6)
        elif c.valu or c.vmem or c.ds:
            if p.D & (c.r | c.w): n = max(n, 12 if big else 8)
            if c.valu and p.C & c.w: n = max(n, 7 if big else 3)
            if (c.vmem or c.ds) and p.C & c.w: n = max(n, 7 if big else 3)
    if p.salu and ("m0", 0) in p.w and c.ldsdma: n = max(n, 1)
    if p.vmem and p.widestore and p.sdata & c.w: n = max(n, 2)
    return n

def pad_hazards(lines, verbose=False):
    ins = [Ins(l) for l in lines]
    total = 0
    changed = True
    while changed:
        changed = False
        labels = {x.label: i for i, x in enumerate(ins) if x.label}
        preds = [[] for _ in ins]
        for i, x in enumerate(ins):
            if x.op and (x.op == "s_branch" or x.op.startswith("s_cbranch")):
                preds[labels[x.ops[0]]].append(i)
            if i + 1 < len(ins) and x.op not in ("s_branch", "s_endpgm"):
                preds[i + 1].append(i)
        for i, c in enumerate(ins):
            if c.op is None or c.op in ("s_nop",): continue
            short = 0; why = None
            seen = {}
            stack = [(j, 0) for j in preds[i]]
            while stack:
                j, d = stack.pop()
                if d >= 12 or seen.get(j, 99) <= d: continue
                seen[j] = d
                p = ins[j]
                if p.op is not None:
                    nd = need(p, c)
                    if nd - d > short: short = nd - d; why = p
                dd = d + p.states()
                for q in preds[j]: stack.append((q, dd))
            if short > 0:
                if verbose: print(f"pad {short}: [{why.text.strip()}] -> [{c.text.strip()}]")
                ins.insert(i, Ins(f"s_nop {short-1}"))
                total += short
                changed = True
                break
    return [x.text for x in ins], total

class Asm:
    def __init__(self):
        self.lines = []
    def __call__(self, s):
        for l in s.split("\n"):
            l = l.strip()
            if l: self.lines.append(l)
    def label(self, n): self.lines.append(n + ":")
    def text(self, pad=True, verbose=False):
        L = self.lines
        if pad:
            L, n = pad_hazards_fast(L, verbose)
        return "\n".join(("" if (l.endswith(":") or l.startswith(".")) else "  ") + l for l in L)

def pad_hazards_fast(lines, verbose=False):
    ins = [Ins(l) for l in lines]
    total = 0
    for rnd in range(10):
        labels = {x.label: i for i, x in enumerate(ins) if x.label}
        preds = [[] for _ in ins]
        for i, x in enumerate(ins):
            if x.op and (x.op == "s_branch" or x.op.startswith("s_cbranch")):
                preds[labels[x.ops[0]]].append(i)
            if i + 1 < len(ins) and x.op not in ("s_branch", "s_endpgm"):
                preds[i + 1].append(i)
        extra = [0] * len(ins)
        for i, c in enumerate(ins):
            if c.op is None or c.op == "s_nop": continue
            short = 0; why = None
            seen = {}
            stack = [(j, 0) for j in preds[i]]
            while stack:
                j, d = stack.pop()
                if d >= 12 or seen.get(j, 99) <= d: continue
                seen[j] = d
                p = ins[j]
                if p.op is not None:
                    nd = need(p, c)
                    if nd - d > short: short = nd - d; why = p
                dd = d + p.states() + extra[j]
                for q in preds[j]: stack.append((q, dd))
            if short > 0:
                if verbose: print(f"pad {short}: [{why.text.strip()}] -> [{c.text.strip()}]")
                extra[i] = short; total += short
        if not any(extra): break
        out = []
        for i, x in enumerate(ins):
            if extra[i]: out.append(Ins(f"s_nop {extra[i]-1}"))
            out.append(x)
        ins = out
    return [x.text for x in ins], total

def kernel_block(name, body, vgpr, accum=None, sgpr=102):
    accum = accum or ((vgpr + 3) // 4 * 4)
    return f""".text
.globl {name}
.p2align 8
.type {name},@function
{name}:
{body}
.section .rodata,"a"
.p2align 6
.amdhsa_kernel {name}
  .amdhsa_next_free_vgpr {vgpr}
  .amdhsa_next_free_sgpr {sgpr}
  .amdhsa_accum_offset {accum}
  .amdhsa_group_segment_fixed_size 0
  .amdhsa_kernarg_size 88
  .amdhsa_user_sgpr_count 2
  .amdhsa_user_sgpr_kernarg_segment_ptr 1
  .amdhsa_system_sgpr_workgroup_id_x 1
.end_amdhsa_kernel
"""
```

```python
from asmgen import *

XB = 0
WB = 98304
LDS_GEMM_END = WB + 3*16384
NST = 10

sX, sW, sWS, sG = 4, 8, 12, 16
sWAVE, sBR, sP, sR = 20, 21, 22, 23
sT0, sT1, sT2, sT3 = 24, 25, 26, 27
sM0X, sM0W = 28, 29
sWM = 30
sSX, sSW = 34, 35
sPTR = 36
vLANE = 1
vTMP = 2
vXO = 6
vWO = 10
vGA = 14
vGD = 15
vXA = 6
vWA = 8
vTX, vTW = 16, 17
vTD = 18
vXF = 20
vWF = 36
vACC = 68
t0, t1, t2, t3 = vTMP, vTMP+1, vTMP+2, vTMP+3

def ptr(i): return sPTR + 2*i
def phi(k): return (k & 3) | (((k >> 3) & 1) << 2)

def emit_setup(A, xmap=0):
    A(f"""
    s_cmp_ge_u32 s2, 256
    s_cbranch_scc1 L_exit
    s_load_dwordx16 s[{sPTR}:{sPTR+15}], s[0:1], 0
    s_load_dwordx4 s[{sPTR+16}:{sPTR+19}], s[0:1], 64
    s_load_dwordx2 s[{sPTR+20}:{sPTR+21}], s[0:1], 80
    v_lshrrev_b32 v{vTMP}, 6, v0
    v_and_b32 v{vLANE}, 63, v0
    v_readfirstlane_b32 s{sWAVE}, v{vTMP}
    s_and_b32 s{sT0}, s2, 7
    s_lshr_b32 s{sT1}, s2, 3
    s_and_b32 s{sR}, s{sT0}, 1
    s_lshl_b32 s{sR}, s{sR}, 2
    s_and_b32 s{sT2}, s{sT1}, 3
    s_add_u32 s{sR}, s{sR}, s{sT2}
    """)
    if xmap == 0:
        A(f"""
        s_lshr_b32 s{sBR}, s{sT1}, 4
        s_lshr_b32 s{sP}, s{sT0}, 1
        s_lshl_b32 s{sP}, s{sP}, 2
        s_bfe_u32 s{sT2}, s{sT1}, 0x20002
        s_add_u32 s{sP}, s{sP}, s{sT2}
        """)
    else:
        A(f"""
        s_lshr_b32 s{sBR}, s{sT0}, 2
        s_and_b32 s{sP}, s{sT0}, 2
        s_lshl_b32 s{sP}, s{sP}, 2
        s_lshr_b32 s{sT2}, s{sT1}, 2
        s_add_u32 s{sP}, s{sP}, s{sT2}
        """)
def wgmap(wg, xmap=0):
    j = wg & 7; n = wg >> 3; r = (j & 1)*4 + (n & 3)
    if xmap == 0: return n >> 4, (j >> 1)*4 + ((n >> 2) & 3), r
    return j >> 2, (j & 2)*4 + (n >> 2), r

def emit_srds(A):
    A(f"""
    s_waitcnt lgkmcnt(0)
    s_mul_i32 s{sT0}, s{sR}, {256*1280}
    s_add_u32 s{sX}, s{ptr(0)}, s{sT0}
    s_addc_u32 s{sX+1}, s{ptr(0)+1}, 0
    s_mov_b32 s{sX+2}, {256*1280}
    s_mov_b32 s{sX+3}, 0x20000
    s_cmp_eq_u32 s{sBR}, 0
    s_cselect_b32 s{sW}, s{ptr(5)}, s{ptr(1)}
    s_cselect_b32 s{sW+1}, s{ptr(5)+1}, s{ptr(1)+1}
    s_mov_b32 s{sW+2}, {640*3840}
    s_mov_b32 s{sW+3}, 0x20000
    s_mov_b32 s{sG}, s{ptr(7)}
    s_mov_b32 s{sG+1}, s{ptr(7)+1}
    s_mov_b32 s{sG+2}, 1280
    s_mov_b32 s{sG+3}, 0x20000
    s_mov_b32 s{sWS}, s{ptr(10)}
    s_mov_b32 s{sWS+1}, s{ptr(10)+1}
    s_mov_b32 s{sWS+2}, 0x10000000
    s_mov_b32 s{sWS+3}, 0x20000
    """)

def wmask(hi):
    m = (1 << 64) - 1
    for rr in range(4):
        unit = 7 ^ (rr | (hi << 2))
        m &= ~(1 << (16*rr + 2*unit + 1))
    return m
def loader_addrs(A):
    A(f"""
    v_lshrrev_b32 v{t0}, 3, v{vLANE}
    s_lshl_b32 s{sT0}, s{sWAVE}, 6
    v_add_u32 v{t0}, s{sT0}, v{t0}
    v_mul_u32_u24 v{t0}, 1280, v{t0}
    v_lshrrev_b32 v{t1}, 4, v{vLANE}
    v_and_b32 v{t2}, 7, v{vLANE}
    v_xor_b32 v{t2}, v{t1}, v{t2}
    v_lshl_add_u32 v{vXO}, v{t2}, 4, v{t0}
    v_xor_b32 v{vXO+1}, 64, v{vXO}
    v_add_u32 v{vXO+1}, {8*1280-1024}, v{vXO+1}
    v_add_u32 v{vXO+2}, {16*1280-2048}, v{vXO}
    v_add_u32 v{vXO+3}, {16*1280-2048}, v{vXO+1}
    """)
    A(f"""
    s_lshl_b32 s{sT0}, s{sWAVE}, 4
    s_mul_i32 s{sT1}, s{sP}, 80
    v_add_u32 v{t3}, s{sT0}, v{t1}
    v_mul_u32_u24 v{t3}, 3840, v{t3}
    v_add_u32 v{t3}, s{sT1}, v{t3}
    v_and_b32 v{t0}, 15, v{vLANE}
    v_lshlrev_b32 v{t1}, 1, v{t1}
    v_xor_b32 v{t0}, v{t0}, v{t1}
    v_mul_u32_u24 v{t2}, 13, v{t0}
    v_lshrrev_b32 v{t2}, 6, v{t2}
    v_mul_u32_u24 v{t2}, 1200, v{t2}
    v_lshl_add_u32 v{t2}, v{t0}, 4, v{t2}
    v_add_u32 v{vWO}, v{t2}, v{t3}
    v_add_u32 v{vWO+1}, {4*3840-1024}, v{vWO}
    v_xor_b32 v{t0}, 8, v{t0}
    v_mul_u32_u24 v{t2}, 13, v{t0}
    v_lshrrev_b32 v{t2}, 6, v{t2}
    v_mul_u32_u24 v{t2}, 1200, v{t2}
    v_lshl_add_u32 v{t2}, v{t0}, 4, v{t2}
    v_add_u32 v{t2}, v{t2}, v{t3}
    v_add_u32 v{vWO+2}, {8*3840-2048}, v{t2}
    v_add_u32 v{vWO+3}, {12*3840-3072}, v{t2}
    s_mul_i32 s{sM0X}, s{sWAVE}, 24576
    s_lshl_b32 s{sM0W}, s{sWAVE}, 12
    s_add_u32 s{sM0W}, s{sM0W}, {WB}
    s_mov_b32 s{sWM}, {hex(wmask(0) & 0xffffffff)}
    s_mov_b32 s{sWM+1}, {hex(wmask(0) >> 32)}
    s_mov_b32 s{sWM+2}, {hex(wmask(1) & 0xffffffff)}
    s_mov_b32 s{sWM+3}, {hex(wmask(1) >> 32)}
    """)
    A(f"""
    v_lshrrev_b32 v{t0}, 4, v{vLANE}
    v_and_b32 v{t1}, 15, v{vLANE}
    v_add_u32 v{t1}, s{sT0}, v{t1}
    v_lshl_add_u32 v{t0}, v{t0}, 6, v{t1}
    v_lshlrev_b32 v{t3}, 1, v{t0}
    v_and_b32 v{t2}, 3, v{vLANE}
    v_bfe_u32 v{t0}, v{vLANE}, 3, 1
    v_lshl_add_u32 v{t2}, v{t0}, 2, v{t2}
    v_xor_b32 v{t2}, 7, v{t2}
    v_lshlrev_b32 v{t2}, 5, v{t2}
    v_lshl_add_u32 v{vGA}, v{t1}, 8, v{t2}
    v_add_u32 v{vGA}, {WB+16}, v{vGA}
    """)
def dma_w(st, fl=""):
    slot = st % 3
    L = [f"s_add_u32 m0, s{sM0W}, {slot*16384}", f"s_mov_b32 s{sSW}, {st*64*3840}"]
    for e in range(4):
        if e % 2 == 0: L.append(f"s_mov_b64 exec, s[{sWM+e}:{sWM+e+1}]")
        L.append(f"buffer_load_dwordx4 v{vWO+e}, s[{sW}:{sW+3}], s{sSW} offen offset:{e*1024} {fl} lds")
    return L + ["s_mov_b64 exec, -1"]
def dma_x(st, fl=""):
    slot = st % 3
    L = []
    for hf in range(2):
        L += [f"s_add_u32 m0, s{sM0X}, {slot*4096 + hf*12288}", f"s_mov_b32 s{sSX}, {st*128 + hf*32*1280}"]
        for q in range(4):
            L.append(f"buffer_load_dwordx4 v{vXO+q}, s[{sX}:{sX+3}], s{sSX} offen offset:{q*1024} {fl} lds")
    return L
def gate_write(st):
    slot = st % 3
    sh = 16*(st % 4)
    lo = (0xffff << sh) & 0xffffffff; hi = (0xffff << sh) >> 32
    return [f"s_mov_b32 exec_lo, {hex(lo)}", f"s_mov_b32 exec_hi, {hex(hi)}",
            f"ds_write_b16 v{vGA}, v{vGD + st//4} offset:{slot*16384}",
            f"s_mov_b64 exec, -1"]
def emit_loader(A, pre=2, stamp=None, fl=""):
    for j in range(3):
        A(f"buffer_load_ushort v{vGD+j}, v{t3}, s[{sG}:{sG+3}], 0 offen offset:{512*j}")
    for st in range(pre):
        for l in dma_w(st, fl) + dma_x(st, fl): A(l)
        if stamp: stamp(A, 11+st)
    A(f"s_waitcnt vmcnt({12*pre})")
    for st in range(3):
        for l in gate_write(st): A(l)
    A(f"s_waitcnt vmcnt({12*(pre-1)}) lgkmcnt(0)")
    A("s_barrier")
    if stamp: stamp(A, 1)
    issued = pre
    for st in range(NST-1):
        while issued <= min(st + 2, NST-1) and (issued <= st + 1 or True):
            L = dma_w(issued, fl) + (gate_write(issued) if issued >= 3 else []) + dma_x(issued, fl)
            for l in L: A(l)
            if stamp and issued < 3: stamp(A, 11+issued)
            issued += 1
            if pre == 1 and st == 0: break
        nout = 12*(issued - 1 - (st+1))
        A(f"s_waitcnt vmcnt({nout}) lgkmcnt(0)")
        A("s_barrier")
        if stamp: stamp(A, 2+st)

def compute_addrs(A):
    A(f"""
    s_mul_i32 s{sM0X}, s{sWAVE}, 12288
    v_and_b32 v{t0}, 15, v{vLANE}
    v_lshrrev_b32 v{t1}, 4, v{vLANE}
    v_bfe_u32 v{t2}, v{vLANE}, 1, 3
    v_xor_b32 v{t2}, v{t1}, v{t2}
    v_lshlrev_b32 v{t2}, 4, v{t2}
    v_lshl_add_u32 v{t2}, v{t0}, 7, v{t2}
    v_add_u32 v{vXA}, s{sM0X}, v{t2}
    v_xor_b32 v{vXA+1}, 64, v{vXA}
    """)
    A(f"""
    v_bfe_u32 v{t0}, v{vLANE}, 2, 2
    v_lshl_add_u32 v{t1}, v{t1}, 3, v{t0}
    v_lshlrev_b32 v{t1}, 8, v{t1}
    v_bfe_u32 v{t0}, v{vLANE}, 2, 3
    v_lshl_add_u32 v{t1}, v{t0}, 5, v{t1}
    v_add_u32 v{t1}, {WB}, v{t1}
    v_and_b32 v{t2}, 1, v{vLANE}
    v_bfe_u32 v{t3}, v{vLANE}, 1, 1
    v_lshl_add_u32 v{t2}, v{t2}, 1, v{t3}
    v_lshl_add_u32 v{vWA}, v{t2}, 3, v{t1}
    """)
    for T in range(1, 7): A(f"v_xor_b32 v{vWA+T}, {32*T}, v{vWA}")
    A(f"""
    v_min_u32 v{t2}, 2, v{t2}
    v_lshl_add_u32 v{t3}, v{t2}, 3, v{t1}
    v_xor_b32 v{vWA+7}, {32*7}, v{t3}
    """)
def rd_x(st, i, nt):
    d = vXF + 8*(i % 2) + 4*nt
    return f"ds_read_b128 v[{d}:{d+3}], v{vXA+i} offset:{(st % 3)*4096 + nt*2048}"
def rd_w(st, i, T):
    return [f"ds_read_b64_tr_b16 v[{vWF+4*T+2*e}:{vWF+4*T+2*e+1}], v{vWA+T} offset:{(st % 3)*16384 + (32*i+4*e)*256}" for e in range(2)]
def mfma(T, nt, i, first):
    acc = vr(vACC + 8*T + 4*nt, 4)
    return f"v_mfma_f32_16x16x32_bf16 {acc}, {vr(vWF+4*T,4)}, {vr(vXF+8*(i%2)+4*nt,4)}, {'0' if first else acc}"

class LdsTrack:
    def __init__(self, A): self.A = A; self.q = []
    def issue(self, line, tag): self.A(line); self.q.append(tag)
    def need(self, tags):
        idx = [i for i, t in enumerate(self.q) if t in tags]
        if not idx: return
        n = len(self.q) - 1 - max(idx)
        n = min(n, 14)
        self.A(f"s_waitcnt lgkmcnt({n})")
        self.q = self.q[len(self.q)-n:] if n else []
    def drain(self):
        self.A("s_waitcnt lgkmcnt(0)"); self.q = []

def emit_gemm(A, stamp=None, hook=None, bar_at=2):
    K = LdsTrack(A)
    A("s_barrier")
    if stamp: stamp(A, 1);
    for nt in range(2): K.issue(rd_x(0, 0, nt), ("x", 0))
    for T in range(8):
        for l in rd_w(0, 0, T): K.issue(l, ("w", 0, T))
    for j in range(2*NST):
        st, i = j // 2, j % 2
        nst, ni = (j+1) // 2, (j+1) % 2
        last = j == 2*NST - 1
        pend = []
        if not last:
            pend = [(rd_x(nst, ni, nt), ("x", j+1)) for nt in range(2)]
        blocked = (i == 1 and not last)
        for T in range(8):
            if blocked and T == bar_at:
                K.drain()
                A("s_barrier")
                blocked = False
            K.need({("x", j), ("w", j, T), "stamp"})
            A(mfma(T, 0, i, j == 0))
            if not blocked:
                for _ in range(2):
                    if pend: l, tg = pend.pop(0); K.issue(l, tg)
            A(mfma(T, 1, i, j == 0))
            if not last: pend += [(l, ("w", j+1, T)) for l in rd_w(nst, ni, T)]
            if not blocked:
                for _ in range(2):
                    if pend: l, tg = pend.pop(0); K.issue(l, tg)
            if hook: hook(A, j, T)
        for l, tg in pend: K.issue(l, tg)

def touch_addrs(A, xmap):
    A(f"""
    s_lshr_b32 s{sT1}, s2, 3
    s_lshr_b32 s{sT2}, s{sT1}, 2
    s_lshl_b32 s{sT2}, s{sT2}, 5
    v_add_u32 v{t0}, s{sT2}, v{vLANE}
    v_mul_u32_u24 v{vTX}, 1280, v{t0}
    """)
    if xmap == 0:
        A(f"""
        s_and_b32 s{sT2}, s{sT1}, 15
        s_lshl_b32 s{sT2}, s{sT2}, 2
        v_mul_u32_u24 v{t1}, 57, v{vLANE}
        v_lshrrev_b32 v{t1}, 9, v{t1}
        v_mul_u32_u24 v{t2}, 9, v{t1}
        v_sub_u32 v{t2}, v{vLANE}, v{t2}
        v_add_u32 v{t1}, s{sT2}, v{t1}
        v_mul_u32_u24 v{t1}, 3840, v{t1}
        v_mul_u32_u24 v{t3}, 11, v{t2}
        v_lshrrev_b32 v{t3}, 5, v{t3}
        v_mul_u32_u24 v{t3}, {1280-384}, v{t3}
        v_lshl_add_u32 v{t2}, v{t2}, 7, v{t3}
        v_add_u32 v{t1}, v{t1}, v{t2}
        s_lshr_b32 s{sT2}, s{sP}, 2
        s_mul_i32 s{sT2}, s{sT2}, 320
        s_and_b32 s{sT2}, s{sT2}, 0xffffff80
        v_add_u32 v{vTW}, s{sT2}, v{t1}
        """)
    else:
        A(f"""
        v_mul_u32_u24 v{t1}, 52, v{vLANE}
        v_lshrrev_b32 v{t1}, 8, v{t1}
        v_mul_u32_u24 v{t1}, {1280-640}, v{t1}
        v_lshl_add_u32 v{t1}, v{vLANE}, 7, v{t1}
        s_mul_i32 s{sT2}, s{sT1}, {2*3840}
        s_lshr_b32 s{sT3}, s{sP}, 3
        s_mul_i32 s{sT3}, s{sT3}, 640
        s_add_u32 s{sT2}, s{sT2}, s{sT3}
        v_add_u32 v{vTW}, s{sT2}, v{t1}
        """)
def touch(A, sreg_stage, xmap, fl=""):
    A(f"""
    s_lshl_b32 s{sSX}, s{sreg_stage}, 7
    s_mul_i32 s{sSW}, s{sreg_stage}, {64*3840}
    s_mov_b32 exec_hi, {'0xf' if xmap == 0 else '0'}
    """)
    if xmap == 1: A("s_mov_b32 exec_lo, 0x3fffffff")
    A(f"""
    buffer_load_dword v{vTD}, v{vTW}, s[{sW}:{sW+3}], s{sSW} offen {fl}
    s_mov_b32 exec_lo, -1
    s_mov_b32 exec_hi, 0
    buffer_load_dword v{vTD+1}, v{vTX}, s[{sX}:{sX+3}], s{sSX} offen {fl}
    s_mov_b64 exec, -1
    """)
```

```python
from gemm3 import *
import math, struct
def f32(x): return hex(struct.unpack("<I", struct.pack("<f", x))[0])
LOG2E = 1.4426950408889634
OB  = 0x000000
KVB = 0x600000
KVP = 0xC00000
FLB = 0xE00000
FLA = 0xE10000
WS_BYTES = 0x1000000
RBS = 12288
WPHI = LDS_GEMM_END
LDS_K1 = WPHI + 2048
NB = WB
sD = 60
sA0, sA1, sA2, sA3 = 64, 65, 66, 67
sCNT = 68
sSPIN = 69
sLO = 70
sOB = 72
sFL = 73
sC0 = 74
SPIN_MAX = 1 << 20
PREG = {c: 20 + 2*c for c in range(10)}
PREG.update({10: 40, 13: 42, 11: 44, 14: 46, 12: 48})
vONE = 50
vGL = 52
vG1 = 53
vMD, vMF = 132, 148

def srd_dbg(A):
    A(f"""
    s_mov_b32 s{sD}, s{ptr(9)}
    s_mov_b32 s{sD+1}, s{ptr(9)+1}
    s_mov_b32 s{sD+2}, 256
    s_mov_b32 s{sD+3}, 0x20000
    s_mov_b32 s{sLO}, -1
    s_mov_b32 s{sLO+1}, 0
    """)
def flag_off(A, dst):
    A(f"""
    s_lshl_b32 s{sA0}, s{sP}, 3
    s_add_u32 s{sA0}, s{sA0}, s{sR}
    s_lshl_b32 s{sA1}, s{sA0}, 7
    s_add_u32 s{sA1}, s{sA1}, {FLB}
    s_lshl_b32 s{sA0}, s{sA0}, 4
    s_add_u32 s{sA0}, s{sA0}, {FLA}
    s_cmp_eq_u32 s{sBR}, 0
    s_cselect_b32 s{dst}, s{sA1}, s{sA0}
    """)
def clear_flags(A):
    A(f"s_cmp_lg_u32 s{sWAVE}, 7\ns_cbranch_scc1 L_noclear")
    flag_off(A, sFL)
    A(f"""
    v_lshlrev_b32 v{t0}, 2, v{vLANE}
    v_mov_b32 v{t1}, 0
    s_mov_b64 exec, 15
    buffer_store_dword v{t1}, v{t0}, s[{sWS}:{sWS+3}], s{sFL} offen sc1
    s_lshl_b32 s{sA0}, s{sBR}, 4
    s_add_u32 s{sA0}, s{sA0}, s{sP}
    s_lshl_b32 s{sA0}, s{sA0}, 2
    s_mov_b64 exec, 1
    v_mov_b32 v{t1}, 1
    s_waitcnt vmcnt(0)
    buffer_atomic_add v{t1}, v{t0}, s[{sD}:{sD+3}], s{sA0} offen sc1
    s_mov_b64 exec, -1
    """)
    A.label("L_noclear")
def poll(A, name, srd, voff, soff, want, lanes, vd):
    m = (1 << lanes) - 1
    A(f"s_mov_b32 s{sSPIN}, {SPIN_MAX}")
    A(f"s_mov_b32 exec_lo, {hex(m & 0xffffffff)}\ns_mov_b32 exec_hi, {hex(m >> 32)}")
    A.label(name)
    A(f"""
    buffer_load_dword v{vd}, v{voff}, s[{srd}:{srd+3}], s{soff} offen sc1
    s_sub_u32 s{sSPIN}, s{sSPIN}, 1
    s_cbranch_scc1 {name}_out
    s_waitcnt vmcnt(0)
    v_cmp_ne_u32 vcc, {want}, v{vd}
    s_cbranch_vccnz {name}
    """)
    A.label(name + "_out")
    A("s_waitcnt vmcnt(0)\ns_mov_b64 exec, -1")

def masks(A):
    BIG = 2.0**100
    A(f"""
    v_and_b32 v{t0}, 31, v{vLANE}
    v_lshrrev_b32 v{t1}, 5, v{vLANE}
    v_lshlrev_b32 v{t1}, 2, v{t1}
    v_sub_u32 v{t0}, v{t0}, v{t1}
    v_cvt_f32_i32 v{t0}, v{t0}
    v_mul_f32 v{t0}, {f32(BIG)}, v{t0}
    """)
    for i in range(16):
        c = 8*(i//4) + i % 4
        A(f"""
        v_add_f32 v{vMD+i}, {f32(-c*BIG) if c else 0}, v{t0}
        v_sub_f32 v{vMF+i}, {f32((c-1)*BIG) if c != 1 else 0}, v{t0}
        v_min_f32 v{vMD+i}, 0, v{vMD+i}
        v_min_f32 v{vMF+i}, 0, v{vMF+i}
        """)

def pack(A, order, scale):
    for T in order:
        a0 = vACC + 8*T
        sc = scale.get(T)
        if sc is not None:
            src = f"s[{sC0}:{sC0+1}]" if sc == "s" else vr(sc, 2)
            for q in range(4): A(f"v_pk_mul_f32 {vr(a0+2*q,2)}, {vr(a0+2*q,2)}, {src}")
        if T < 7:
            d, s = PREG[2*T], PREG[2*T+1]
            for j in range(2):
                A(f"v_cvt_pk_bf16_f32 v{d+j}, v{a0+2*j}, v{a0+2*j+1}")
                A(f"v_cvt_pk_bf16_f32 v{s+j}, v{a0+4+2*j}, v{a0+4+2*j+1}")
            A("#swap16 " + f"{d} {s}")
        else:
            A(f"#swap7")
def finish_pack(A):
    out = []; pend = []
    for l in A.lines:
        if l.startswith("#swap16"):
            _, d, s = l.split(); d = int(d); s = int(s)
            out += pend
            pend = [f"v_permlane16_swap_b32 v{d+j}, v{s+j}" for j in range(2)]
        elif l.startswith("#swap7"):
            a0 = vACC + 56
            out += [f"v_permlane16_swap_b32 v{a0+i}, v{a0+4+i}" for i in range(4)]
            out += pend; pend = []
            out += [f"v_cvt_pk_bf16_f32 v{PREG[14]+j}, v{a0+2*j}, v{a0+2*j+1}" for j in range(2)]
        elif l.startswith("#flush"):
            out += pend; pend = []
        else: out.append(l)
    assert not pend
    A.lines = out
def v_rows(A, base_off):
    for j in range(2):
        A(f"v_permlane32_swap_b32 v{PREG[10]+j}, v{PREG[13]+j}")
        A(f"v_permlane32_swap_b32 v{PREG[11]+j}, v{PREG[14]+j}")
    A(f"""
    v_mul_u32_u24 v{t0}, 48, v{vLANE}
    v_add_u32 v{t0}, s{sM0X}, v{t0}
    """)
    for x in range(3): A(f"ds_write_b128 v{t0}, {vr(40+4*x,4)} offset:{base_off+16*x}")
def gate(A, sign):
    A(f"""
    v_mul_f32 v{vGL}, {f32(-sign*LOG2E)}, v{vACC+60}
    v_exp_f32 v{vGL}, v{vGL}
    v_add_f32 v{vGL}, 1.0, v{vGL}
    v_rcp_f32 v{vGL}, v{vGL}
    """)
def vslot_addr(A, dst0, dst1, hmul, tmpbase=None):
    A(f"""
    v_lshrrev_b32 v{t0}, 5, v{vLANE}
    v_bfe_u32 v{t1}, v{vLANE}, 2, 2
    v_mad_u32_u24 v{t0}, v{t0}, {hmul}, v{t1}
    v_mul_u32_u24 v{t0}, 48, v{t0}
    v_bfe_u32 v{t1}, v{vLANE}, 4, 1
    v_and_b32 v{t2}, 3, v{vLANE}
    v_lshl_add_u32 v{t2}, v{t1}, 2, v{t2}
    v_min_u32 v{t3}, 5, v{t2}
    v_lshl_add_u32 v{dst0}, v{t3}, 3, v{t0}
    v_xor_b32 v{t2}, v{t1}, v{t2}
    v_min_u32 v{t3}, 5, v{t2}
    v_lshl_add_u32 v{dst1}, v{t3}, 3, v{t0}
    v_add_u32 v{dst1}, 1536, v{dst1}
    """)

vQ0, vQ0r, vQ1, vQ1r = 20, 24, 26, 54
vKm, vKr = 56, 60
vO = [68, 84]; vS = 100; vPk = 116; vV = 124
vL16, vL8, vVA = 6, 7, 8
vAK, vAR, vAV = 10, 11, 12
def attn_tile(A, hd, cmask, oinit, stride):
    Q, Qr, O = (vQ0, vQ0r, vO[0]) if hd == 0 else (vQ1, vQ1r, vO[1])
    S = vr(vS, 16)
    A("s_waitcnt lgkmcnt(0)")
    A(f"v_mfma_f32_32x32x16_bf16 {S}, {vr(vKm,4)}, {vr(Q,4)}, {vr(cmask,16) if cmask else 0}")
    A(f"v_mfma_f32_32x32x8_bf16 {S}, {vr(vKr,2)}, {vr(Qr,2)}, {S}")
    for a in range(2):
        for e in range(2):
            A(f"ds_read_b64_tr_b16 {vr(vV+4*a+2*e,2)}, v{vAV} offset:{2560 + (16*a+8*e)*48}")
    A(f"""
    v_add_u32 v{vAK}, {stride}, v{vAK}
    v_add_u32 v{vAR}, {stride}, v{vAR}
    v_add_u32 v{vAV}, {stride}, v{vAV}
    ds_read_b128 {vr(vKm,4)}, v{vAK} offset:{1024*hd}
    ds_read_b64 {vr(vKr,2)}, v{vAR} offset:2048
    """)
    for a in range(2):
        for i in range(8):
            A(f"v_exp_f32 v{vS+8*a+i}, v{vS+8*a+i}")
            if i >= 3 and i % 2 == 1: A(f"v_cvt_pk_bf16_f32 v{vPk+4*a+(i-3)//2}, v{vS+8*a+i-3}, v{vS+8*a+i-2}")
            if a == 1 and i == 0: A(f"v_cvt_pk_bf16_f32 v{vPk+3}, v{vS+6}, v{vS+7}")
            if a == 1 and i == 2:
                A("s_waitcnt lgkmcnt(2)")
                A(f"v_mfma_f32_32x32x16_bf16 {vr(O,16)}, {vr(vV,4)}, {vr(vPk,4)}, {0 if oinit else vr(O,16)}")
    A(f"s_sub_u32 s{sCNT}, s{sCNT}, 1")
    A(f"v_cvt_pk_bf16_f32 v{vPk+7}, v{vS+14}, v{vS+15}")
    A(f"v_mfma_f32_32x32x16_bf16 {vr(O,16)}, {vr(vV+4,4)}, {vr(vPk+4,4)}, {vr(O,16)}")
def attn_call(A, name, hd, sbase, stride, cmask, oinit):
    A(f"""
    v_add_u32 v{vAK}, s{sbase}, v{vL16}
    v_add_u32 v{vAR}, s{sbase}, v{vL8}
    v_add_u32 v{vAV}, s{sbase}, v{vVA+hd}
    ds_read_b128 {vr(vKm,4)}, v{vAK} offset:{1024*hd}
    ds_read_b64 {vr(vKr,2)}, v{vAR} offset:2048
    """)
    attn_tile(A, hd, cmask, oinit, stride)
    A(f"s_cbranch_scc1 {name}_done")
    A.label(name)
    attn_tile(A, hd, None, False, stride)
    A(f"s_cbranch_scc0 {name}")
    A.label(name + "_done")
def o_finish(A, O, g, eps, dst):
    if eps: A(f"v_add_f32 v{O+12}, {f32(eps)}, v{O+12}")
    A(f"v_rcp_f32 v{O+12}, v{O+12}")
    A(f"v_mul_f32 v{O+12}, v{g}, v{O+12}")
    for q in range(6): A(f"v_pk_mul_f32 {vr(O+2*q,2)}, {vr(O+2*q,2)}, {vr(O+12,2)} op_sel_hi:[1,0]")
    for q in range(6): A(f"v_cvt_pk_bf16_f32 v{dst+q}, v{O+2*q}, v{O+2*q+1}")

def compute_B(A):
    c = 20**-0.5 * LOG2E
    A(f"""
    s_mov_b32 s{sC0}, {f32(c)}
    s_mov_b32 s{sC0+1}, {f32(c)}
    v_bfe_u32 v{t0}, v{vLANE}, 4, 1
    v_cmp_eq_u32 vcc, 0, v{t0}
    v_mov_b32 v{t0}, s{sC0}
    v_mov_b32 v{vONE}, 0x3f803f80
    v_mov_b32 v{vONE+1}, 0x3f803f80
    v_cndmask_b32 v{t2}, 1.0, v{t0}, vcc
    v_cndmask_b32 v{t3}, 1.0, v{t0}, vcc
    v_lshlrev_b32 v{vL16}, 4, v{vLANE}
    v_lshlrev_b32 v{vL8}, 3, v{vLANE}
    """)
    pack(A, [2, 3, 4, 5, 6, 7, 1, 0], {0: "s", 1: "s", 2: t2})
    A("#flush"); finish_pack(A)
    gate(A, -1)
    A(f"""
    v_add_u32 v{vAK}, s{sM0X}, v{vL16}
    v_add_u32 v{vAR}, s{sM0X}, v{vL8}
    ds_write_b128 v{vAK}, {vr(PREG[5],4)}
    ds_write_b128 v{vAK}, {vr(PREG[8],4)} offset:1024
    ds_write_b64 v{vAR}, {vr(PREG[7],2)} offset:2048
    """)
    v_rows(A, 2560)
    A(f"""
    ds_write_b128 v{vAK}, {vr(PREG[3],4)} offset:5632
    ds_write_b64 v{vAR}, {vr(PREG[2],2)} offset:6656
    ds_write_b32 v{vAR}, v{vGL} offset:7168
    """)
    vslot_addr(A, vVA, vVA+1, 4)
    A(f"""
    s_sub_u32 s{sA1}, 7, s{sWAVE}
    s_mul_i32 s{sA2}, s{sA1}, {RBS}
    v_add_u32 v{t0}, s{sA2}, v{vL16}
    v_add_u32 v{t1}, s{sA2}, v{vL8}
    s_waitcnt lgkmcnt(0)
    s_mov_b32 exec_lo, 0
    v_mov_b32 v{vQ0r}, 0
    v_mov_b32 v{vQ0r+1}, 0
    s_mov_b32 exec_lo, -1
    s_barrier
    ds_read_b128 {vr(vQ1,4)}, v{t0} offset:5632
    ds_read_b64 {vr(vQ1r,2)}, v{t1} offset:6656
    ds_read_b32 v{vG1}, v{t1} offset:7168
    s_mov_b32 s{sCNT}, s{sWAVE}
    """)
    attn_call(A, "L_at0", 0, sM0X, -RBS, vMD, True)
    A(f"""
    s_mov_b32 exec_hi, 0
    v_mov_b32 v{vQ1r}, 0
    v_mov_b32 v{vQ1r+1}, 0
    s_mov_b32 exec_hi, -1
    s_mov_b32 s{sCNT}, s{sA1}
    """)
    attn_call(A, "L_at1", 1, sA2, -RBS, vMD, True)
    A(f"""
    s_cmp_eq_u32 s{sR}, 0
    s_cbranch_scc1 L_at_end
    s_mul_i32 s{sA2}, s{sA1}, 5632
    s_add_u32 s{sA2}, s{sA2}, {NB}
    s_mov_b32 s{sCNT}, s{sWAVE}
    s_barrier
    """)
    attn_call(A, "L_at2", 1, sA2, 5632, vMF, False)
    A(f"""
    s_mul_i32 s{sA2}, s{sWAVE}, 5632
    s_add_u32 s{sA2}, s{sA2}, {NB}
    s_mov_b32 s{sCNT}, s{sA1}
    """)
    attn_call(A, "L_at3", 0, sA2, 5632, vMF, False)
    A.label("L_at_end")
    A(f"""
    s_lshl_b32 s{sA0}, s{sR}, 3
    s_add_u32 s{sA2}, s{sA0}, s{sA1}
    s_add_u32 s{sA0}, s{sA0}, s{sWAVE}
    s_mul_i32 s{sA0}, s{sA0}, 81920
    s_mul_i32 s{sA2}, s{sA2}, 81920
    s_add_u32 s{sA3}, s{sP}, 16
    s_mul_i32 s{sA3}, s{sA3}, 2560
    s_add_u32 s{sA0}, s{sA0}, s{sA3}
    s_add_u32 s{sA2}, s{sA2}, s{sA3}
    s_waitcnt lgkmcnt(0)
    """)
    o_finish(A, vO[1], vG1, 0, 30)
    A(f"""
    buffer_store_dwordx4 {vr(30,4)}, v{vL16}, s[{sWS}:{sWS+3}], s{sA2} offen offset:1024 sc1
    s_mov_b32 exec_lo, 0
    buffer_store_dwordx2 {vr(34,2)}, v{vL8}, s[{sWS}:{sWS+3}], s{sA2} offen offset:2048 sc1
    s_mov_b32 exec_lo, -1
    """)
    o_finish(A, vO[0], vGL, 0, 36)
    A(f"""
    buffer_store_dwordx4 {vr(36,4)}, v{vL16}, s[{sWS}:{sWS+3}], s{sA0} offen sc1
    s_mov_b32 exec_hi, 0
    buffer_store_dwordx2 {vr(40,2)}, v{vL8}, s[{sWS}:{sWS+3}], s{sA0} offen offset:2048 sc1
    s_mov_b32 exec_hi, -1
    """)

def wait_group(A):
    A(f"""
    s_lshl_b32 s{sA0}, s{sBR}, 4
    s_add_u32 s{sA0}, s{sA0}, s{sP}
    s_lshl_b32 s{sA0}, s{sA0}, 2
    v_mov_b32 v{t0}, 0
    """)
    poll(A, "L_grp", sD, t0, sA0, 8, 1, t1)
    flag_off(A, sFL)
def set_flag(A):
    A(f"""
    s_lshl_b32 s{sA0}, s{sWAVE}, 2
    v_mov_b32 v{t0}, s{sA0}
    v_mov_b32 v{t1}, 1
    s_mov_b64 exec, 1
    s_waitcnt vmcnt(0)
    buffer_store_dword v{t1}, v{t0}, s[{sWS}:{sWS+3}], s{sFL} offen sc1
    s_mov_b64 exec, -1
    """)
def loader_B(A):
    A(f"""
    v_lshlrev_b32 v{vL16}, 4, v{vLANE}
    v_add_u32 v{t2}, s{sM0X}, v{vL16}
    s_lshl_b32 s{sA1}, s{sP}, 3
    s_add_u32 s{sA1}, s{sA1}, s{sR}
    s_lshl_b32 s{sA1}, s{sA1}, 2
    s_add_u32 s{sA1}, s{sA1}, s{sWAVE}
    s_mul_i32 s{sA1}, s{sA1}, 11264
    s_add_u32 s{sA1}, s{sA1}, {KVB}
    s_barrier
    s_cmp_eq_u32 s{sR}, 7
    s_cbranch_scc1 L_nopub
    """)
    for b in range(2):
        for q in range(6): A(f"ds_read_b128 {vr(20+24*b+4*q,4)}, v{t2} offset:{b*RBS + q*1024}")
    for b in range(2):
        for q in range(6):
            off = b*5632 + q*1024
            if off % 4096 < 1024 or q == 0: A(f"s_add_u32 s{sA2}, s{sA1}, {off & ~4095}")
            A(f"s_waitcnt lgkmcnt({11 - (6*b+q)})")
            if q == 5: A("s_mov_b32 exec_hi, 0")
            A(f"buffer_store_dwordx4 {vr(20+24*b+4*q,4)}, v{vL16}, s[{sWS}:{sWS+3}], s{sA2} offen offset:{off & 4095} sc1")
            if q == 5: A("s_mov_b32 exec_hi, -1")
    set_flag(A)
    A.label("L_nopub")
    A(f"""
    s_cmp_eq_u32 s{sR}, 0
    s_cbranch_scc1 L_exit
    s_lshl_b32 s{sA0}, s{sWAVE}, 2
    v_mov_b32 v{t0}, s{sA0}
    s_sub_u32 s{sA2}, s{sFL}, 128
    """)
    poll(A, "L_pollB", sWS, t0, sA2, 1, 1, t1)
    A(f"""
    s_sub_u32 s{sA1}, s{sA1}, {4*11264}
    s_mul_i32 s{sA2}, s{sWAVE}, 11264
    s_add_u32 s{sA2}, s{sA2}, {NB}
    """)
    for q in range(11):
        if q % 4 == 0:
            A(f"s_add_u32 m0, s{sA2}, {q*1024}\ns_add_u32 s{sA3}, s{sA1}, {q*1024}")
        A(f"buffer_load_dwordx4 v{vL16}, s[{sWS}:{sWS+3}], s{sA3} offen offset:{(q % 4)*1024} sc1 lds")
    A("s_waitcnt vmcnt(0)\ns_barrier")

vWm = [132, 136]; vW1 = [140, 144]; vWr = [148, 150]; vW1r = 152
vF = [68, 84]; vF1 = 100
vPH = [116, 54]
def wphi_operands(A):
    A(f"""
    v_lshrrev_b32 v{t0}, 5, v{vLANE}
    v_bfe_u32 v{t1}, v{vLANE}, 2, 2
    v_lshl_add_u32 v{t2}, v{t0}, 2, v{t1}
    v_mul_u32_u24 v{t2}, 40, v{t2}
    v_add_u32 v{t2}, {WPHI}, v{t2}
    v_bfe_u32 v{t3}, v{vLANE}, 4, 1
    v_bfe_u32 v{t1}, v{vLANE}, 1, 1
    v_lshl_add_u32 v{t3}, v{t3}, 1, v{t1}
    v_lshl_add_u32 v{t3}, v{t3}, 3, v{t2}
    """)
    for hd in range(2):
        for e in range(2):
            off = hd*800 + 4*(hd + 2*e)*40
            A(f"ds_read_b64_tr_b16 {vr(vWm[hd]+2*e,2)}, v{t3} offset:{off}")
            A(f"ds_read_b64_tr_b16 {vr(vW1[hd]+2*e,2)}, v{t2} offset:{off+32}")
    A(f"ds_read_b64_tr_b16 {vr(vWr[0],2)}, v{t3} offset:640")
    A(f"ds_read_b64_tr_b16 {vr(vW1r,2)}, v{t2} offset:{640+32}")
    A(f"""
    v_bfe_i32 v{t1}, v{vLANE}, 2, 1
    v_and_b32 v{t1}, 0x80008000, v{t1}
    v_bfe_i32 v{t2}, v{vLANE}, 3, 1
    v_bfe_i32 v{t3}, v{vLANE}, 5, 1
    v_xor_b32 v{t0}, v{t2}, v{t3}
    s_waitcnt lgkmcnt(0)
    """)
    for q in range(4):
        for hd in range(2):
            A(f"v_xor_b32 v{vWm[hd]+q}, v{t1}, v{vWm[hd]+q}")
            A(f"v_bitop3_b32 v{vW1[hd]+q}, v{vW1[hd]+q}, v{t1}, v{t2} bitop3:{'0x28' if hd else '0x14'}")
    for q in range(2):
        A(f"v_bitop3_b32 v{vWr[1]+q}, v{vWr[0]+q}, v{t1}, v{t3} bitop3:0x28")
        A(f"v_bitop3_b32 v{vWr[0]+q}, v{vWr[0]+q}, v{t1}, v{t3} bitop3:0x14")
        A(f"v_bitop3_b32 v{vW1r+q}, v{vW1r+q}, v{t1}, v{t0} bitop3:0x14")
def features(A, c0):
    m = [PREG[c0], PREG[c0+3]]; rem = PREG[c0+2]
    A(f"v_mfma_f32_32x32x16_bf16 {vr(vF[0],16)}, {vr(vWm[0],4)}, {vr(m[0],4)}, 0")
    A(f"v_mfma_f32_32x32x8_bf16 {vr(vF[0],16)}, {vr(vWr[0],2)}, {vr(rem,2)}, {vr(vF[0],16)}")
    A(f"v_mfma_f32_32x32x16_bf16 {vr(vF1,16)}, {vr(vW1[0],4)}, {vr(m[0],4)}, 0")
    A(f"v_mfma_f32_32x32x16_bf16 {vr(vF1,16)}, {vr(vW1[1],4)}, {vr(m[1],4)}, {vr(vF1,16)}")
    A(f"v_mfma_f32_32x32x8_bf16 {vr(vF1,16)}, {vr(vW1r,2)}, {vr(rem,2)}, {vr(vF1,16)}")
    A(f"v_mfma_f32_32x32x16_bf16 {vr(vF[1],16)}, {vr(vWm[1],4)}, {vr(m[1],4)}, 0")
    A(f"v_mfma_f32_32x32x8_bf16 {vr(vF[1],16)}, {vr(vWr[1],2)}, {vr(rem,2)}, {vr(vF[1],16)}")
    for hd in range(2):
        R = [vF[hd]+i for i in range(16)] + [vF1+4*hd+i for i in range(4)]
        A(f"v_max3_f32 v{t0}, v{R[0]}, v{R[1]}, v{R[2]}")
        A(f"v_max3_f32 v{t1}, v{R[3]}, v{R[4]}, v{R[5]}")
        for q in range(3):
            A(f"v_max3_f32 v{t0}, v{R[6+4*q]}, v{R[7+4*q]}, v{t0}")
            A(f"v_max3_f32 v{t1}, v{R[8+4*q]}, v{R[9+4*q]}, v{t1}")
        A(f"v_max3_f32 v{t0}, v{R[18]}, v{R[19]}, v{t0}")
        A(f"v_max_f32 v{t0}, v{t0}, v{t1}")
        for q in range(10):
            A(f"v_pk_add_f32 {vr(R[2*q],2)}, {vr(R[2*q],2)}, {vr(t0,2)} op_sel_hi:[1,0] neg_lo:[0,1] neg_hi:[0,1]")
        for q in range(10):
            A(f"v_exp_f32 v{R[2*q]}, v{R[2*q]}")
            A(f"v_exp_f32 v{R[2*q+1]}, v{R[2*q+1]}")
            if q == 2: A(f"v_pk_add_f32 {vr(t2,2)}, {vr(R[0],2)}, {vr(R[2],2)}")
            if q > 2: A(f"v_pk_add_f32 {vr(t2,2)}, {vr(t2,2)}, {vr(R[2*q-2],2)}")
        A(f"v_pk_add_f32 {vr(t2,2)}, {vr(t2,2)}, {vr(R[18],2)}")
        A(f"v_add_f32 v{t2}, v{t2}, v{t3}")
        A(f"v_rcp_f32 v{t2}, v{t2}")
        for q in range(10):
            A(f"v_pk_mul_f32 {vr(R[2*q],2)}, {vr(R[2*q],2)}, {vr(t2,2)} op_sel_hi:[1,0]")
        for q in range(10):
            A(f"v_cvt_pk_bf16_f32 v{vPH[hd]+q}, v{R[2*q]}, v{R[2*q+1]}")
        if c0 == 5:
            A(f"ds_write_b128 v{vAK}, {vr(vPH[hd],4)} offset:{3072+2048*hd}")
            A(f"ds_write_b128 v{vAV}, {vr(vPH[hd]+4,4)} offset:{3072+2048*hd}")
            A(f"ds_write_b64 v{vAR}, {vr(vPH[hd]+8,2)} offset:{7168+512*hd}")
def compute_A(A):
    A(f"""
    s_mov_b32 s{sC0}, {f32(LOG2E)}
    s_mov_b32 s{sC0+1}, {f32(LOG2E)}
    v_mov_b32 v{vONE}, 0x3f803f80
    v_mov_b32 v{vONE+1}, 0x3f803f80
    v_lshlrev_b32 v{vL16}, 4, v{vLANE}
    v_lshlrev_b32 v{vL8}, 3, v{vLANE}
    """)
    wphi_operands(A)
    pack(A, [2, 3, 4, 5, 6, 7, 1, 0], {T: "s" for T in range(5)})
    A("#flush"); finish_pack(A)
    gate(A, 1)
    v_rows(A, 0)
    A(f"""
    v_and_b32 v{t0}, 31, v{vLANE}
    v_lshrrev_b32 v{t1}, 5, v{vLANE}
    v_bfe_u32 v{t2}, v{vLANE}, 1, 2
    v_lshlrev_b32 v{t3}, 1, v{t1}
    v_xor_b32 v{t2}, v{t2}, v{t3}
    v_lshlrev_b32 v{t2}, 4, v{t2}
    v_lshl_add_u32 v{t2}, v{t0}, 6, v{t2}
    v_add_u32 v{vAK}, s{sM0X}, v{t2}
    v_xor_b32 v{vAV}, 16, v{vAK}
    v_lshlrev_b32 v{t1}, 3, v{t1}
    v_lshl_add_u32 v{t1}, v{t0}, 4, v{t1}
    v_add_u32 v{vAR}, s{sM0X}, v{t1}
    """)
    features(A, 5)
    A("s_waitcnt lgkmcnt(0)\ns_barrier")
    features(A, 0)
    A(f"""
    s_lshl_b32 s{sA0}, s{sR}, 3
    s_add_u32 s{sA0}, s{sA0}, s{sWAVE}
    s_mul_i32 s{sA0}, s{sA0}, 81920
    s_mul_i32 s{sA3}, s{sP}, 2560
    s_add_u32 s{sA0}, s{sA0}, s{sA3}
    v_add_u32 v{t0}, {WB}, v{vL16}
    v_add_u32 v{t1}, {WB}, v{vL8}
    s_barrier
    """)
    op = [20, 30]
    for hd in range(2):
        A(f"ds_read_b128 {vr(op[hd],4)}, v{t0} offset:{2560*hd}")
        A(f"ds_read_b128 {vr(op[hd]+4,4)}, v{t0} offset:{2560*hd+1024}")
        A(f"ds_read_b64 {vr(op[hd]+8,2)}, v{t1} offset:{2560*hd+2048}")
    for hd in range(2):
        O = vr(vF[hd], 16)
        A(f"s_waitcnt lgkmcnt({3-3*hd})")
        A(f"v_mfma_f32_32x32x16_bf16 {O}, {vr(op[hd],4)}, {vr(vPH[hd],4)}, 0")
        A(f"v_mfma_f32_32x32x16_bf16 {O}, {vr(op[hd]+4,4)}, {vr(vPH[hd]+4,4)}, {O}")
        A(f"v_mfma_f32_32x32x8_bf16 {O}, {vr(op[hd]+8,2)}, {vr(vPH[hd]+8,2)}, {O}")
    o_finish(A, vF[0], vGL, 1e-6, 100)
    A(f"buffer_store_dwordx4 {vr(100,4)}, v{vL16}, s[{sWS}:{sWS+3}], s{sA0} offen sc1")
    o_finish(A, vF[1], vGL, 1e-6, 106)
    A(f"""
    buffer_store_dwordx4 {vr(106,4)}, v{vL16}, s[{sWS}:{sWS+3}], s{sA0} offen offset:1024 sc1
    v_cndmask_b32 v112, v110, v104, s[{sLO}:{sLO+1}]
    v_cndmask_b32 v113, v111, v105, s[{sLO}:{sLO+1}]
    buffer_store_dwordx2 {vr(112,2)}, v{vL8}, s[{sWS}:{sWS+3}], s{sA0} offen offset:2048 sc1
    """)
def stage_wphi(A):
    A(f"""
    s_cmp_lg_u32 s{sWAVE}, 6
    s_cbranch_scc1 L_nophi
    s_mul_i32 s{sA0}, s{sP}, 1600
    s_add_u32 s{sG}, s{ptr(2)}, s{sA0}
    s_addc_u32 s{sG+1}, s{ptr(2)+1}, 0
    s_mov_b32 s{sG+2}, 1600
    s_mov_b32 s{sG+3}, 0x20000
    s_mov_b32 m0, {WPHI}
    v_lshlrev_b32 v{t0}, 4, v{vLANE}
    buffer_load_dwordx4 v{t0}, s[{sG}:{sG+3}], 0 offen lds
    buffer_load_dwordx4 v{t0}, s[{sG}:{sG+3}], 0 offen offset:1024 lds
    s_waitcnt vmcnt(0)
    """)
    A.label("L_nophi")
def loader_A(A):
    vAa = 8
    vB = 12
    vslot_addr(A, vB, vB+1, 8)
    A(f"""
    s_and_b32 s{sA1}, s{sWAVE}, 1
    s_lshr_b32 s{sA2}, s{sWAVE}, 1
    s_cmp_eq_u32 s{sA1}, 0
    s_cselect_b64 vcc, -1, 0
    v_lshlrev_b32 v{vL16}, 4, v{vLANE}
    v_lshlrev_b32 v{vL8}, 3, v{vLANE}
    v_cndmask_b32 v{vB}, v{vB+1}, v{vB}, vcc
    v_lshrrev_b32 v{t0}, 5, v{vLANE}
    v_bfe_u32 v{t1}, v{vLANE}, 2, 2
    v_lshl_add_u32 v{t0}, v{t0}, 3, v{t1}
    s_cmp_eq_u32 s{sA2}, 0
    s_cbranch_scc0 L_kv_t1
    """)
    A(f"""
    s_lshl_b32 s{sA0}, s{sA1}, 11
    s_add_u32 s{sA0}, s{sA0}, 3072
    v_and_b32 v{t1}, 1, v{vLANE}
    v_bfe_u32 v{t2}, v{vLANE}, 4, 1
    v_lshl_add_u32 v{t1}, v{t1}, 1, v{t2}
    v_bfe_u32 v{t2}, v{vLANE}, 3, 1
    v_xor_b32 v{t1}, v{t1}, v{t2}
    v_lshlrev_b32 v{t1}, 4, v{t1}
    v_lshl_add_u32 v{t1}, v{t0}, 6, v{t1}
    v_bfe_u32 v{t2}, v{vLANE}, 1, 1
    v_lshl_add_u32 v{t1}, v{t2}, 3, v{t1}
    v_add_u32 v{vAa}, s{sA0}, v{t1}
    v_xor_b32 v{vAa+1}, 32, v{vAa}
    v_add_u32 v{vAa+1}, 256, v{vAa+1}
    v_add_u32 v{vAa+2}, 1024, v{vAa}
    v_add_u32 v{vAa+3}, 1024, v{vAa+1}
    s_branch L_kv_go
    """)
    A.label("L_kv_t1")
    A(f"""
    s_lshl_b32 s{sA0}, s{sA1}, 9
    s_add_u32 s{sA0}, s{sA0}, 7168
    v_and_b32 v{t1}, 1, v{vLANE}
    v_lshlrev_b32 v{t1}, 3, v{t1}
    v_lshl_add_u32 v{t1}, v{t0}, 4, v{t1}
    v_add_u32 v{vAa}, s{sA0}, v{t1}
    v_add_u32 v{vAa+1}, 64, v{vAa}
    v_add_u32 v{vAa+2}, 256, v{vAa}
    v_add_u32 v{vAa+3}, 320, v{vAa}
    """)
    A.label("L_kv_go")
    A(f"""
    s_lshl_b32 s{sA0}, s{sP}, 3
    s_add_u32 s{sA0}, s{sA0}, s{sR}
    s_mul_i32 s{sA0}, s{sA0}, 10240
    s_mul_i32 s{sA3}, s{sA1}, 5120
    s_add_u32 s{sA3}, s{sA3}, {KVP}
    s_add_u32 s{sOB}, s{sA0}, s{sA3}
    s_barrier
    """)
    ACC = 20; FR = 36
    K = LdsTrack(A)
    def rd(n):
        blk, a = n // 2, n % 2
        if n == 8:
            for q in range(5): A(f"v_add_u32 v{vAa+q}, {4*RBS}, v{vAa+q}")
        f = FR + 8*(n % 4)
        for e in range(2):
            K.issue(f"ds_read_b64_tr_b16 {vr(f+2*e,2)}, v{vAa+2*a+e} offset:{(blk % 4)*RBS}", n)
            K.issue(f"ds_read_b64_tr_b16 {vr(f+4+2*e,2)}, v{vB} offset:{(blk % 4)*RBS + (16*a+4*e)*48}", n)
    for n in range(3): rd(n)
    for n in range(16):
        K.need({n})
        f = FR + 8*(n % 4)
        A(f"v_mfma_f32_32x32x16_bf16 {vr(ACC,16)}, {vr(f,4)}, {vr(f+4,4)}, {vr(ACC,16) if n else 0}")
        if n + 3 < 16: rd(n+3)
    A(f"""
    s_cmp_eq_u32 s{sA2}, 0
    s_cbranch_scc1 L_kv_s0
    s_add_u32 s{sA0}, s{sOB}, 4096
    buffer_store_dwordx4 {vr(ACC,4)}, v{vL16}, s[{sWS}:{sWS+3}], s{sA0} offen sc1
    s_branch L_kv_s1
    """)
    A.label("L_kv_s0")
    for q in range(4): A(f"buffer_store_dwordx4 {vr(ACC+4*q,4)}, v{vL16}, s[{sWS}:{sWS+3}], s{sOB} offen offset:{1024*q} sc1")
    A.label("L_kv_s1")
    set_flag(A)
    A(f"""
    v_lshlrev_b32 v{t0}, 2, v{vLANE}
    s_and_b32 s{sA0}, s{sFL}, 0xffffff80
    """)
    poll(A, "L_pollA", sWS, t0, sA0, 1, 32, t1)
    A(f"""
    s_mul_i32 s{sA0}, s{sP}, {8*10240}
    s_add_u32 s{sA0}, s{sA0}, s{sA3}
    s_lshl_b32 s{sA3}, s{sA2}, 11
    s_add_u32 s{sA0}, s{sA0}, s{sA3}
    s_mul_i32 s{sA1}, s{sA1}, 2560
    s_lshl_b32 s{sA3}, s{sA2}, 10
    s_add_u32 s{sA1}, s{sA1}, s{sA3}
    s_add_u32 s{sA1}, s{sA1}, {WB}
    v_add_u32 v{t2}, s{sA1}, v{vL16}
    v_add_u32 v{t3}, s{sA1}, v{vL8}
    s_mov_b32 s{sA3}, s{sA0}
    """)
    D = 20
    for rr in range(8):
        for q in range(2): A(f"buffer_load_dwordx4 {vr(D+8*rr+4*q,4)}, v{vL16}, s[{sWS}:{sWS+3}], s{sA3} offen offset:{1024*q} sc1")
        if rr < 7: A(f"s_add_u32 s{sA3}, s{sA3}, 10240")
    A(f"s_cmp_eq_u32 s{sA2}, 0\ns_cbranch_scc1 L_kv_r0")
    E = 84
    for rr in range(8):
        A(f"buffer_load_dwordx4 {vr(E+4*rr,4)}, v{vL16}, s[{sWS}:{sWS+3}], s{sA0} offen offset:2048 sc1")
        if rr < 7: A(f"s_add_u32 s{sA0}, s{sA0}, 10240")
    A("s_waitcnt vmcnt(0)")
    for rr in range(1, 8):
        for q in range(2): A(f"v_pk_add_f32 {vr(E+2*q,2)}, {vr(E+2*q,2)}, {vr(E+4*rr+2*q,2)}")
    for q in range(2): A(f"v_cvt_pk_bf16_f32 v{E+q}, v{E+2*q}, v{E+2*q+1}")
    A(f"ds_write_b64 v{t3}, {vr(E,2)} offset:1024")
    A.label("L_kv_r0")
    A("s_waitcnt vmcnt(0)")
    for rr in range(1, 8):
        for q in range(4): A(f"v_pk_add_f32 {vr(D+2*q,2)}, {vr(D+2*q,2)}, {vr(D+8*rr+2*q,2)}")
    for q in range(4): A(f"v_cvt_pk_bf16_f32 v{D+q}, v{D+2*q}, v{D+2*q+1}")
    A(f"ds_write_b128 v{t2}, {vr(D,4)}")
    A("s_waitcnt lgkmcnt(0)\ns_barrier")

def gen_k1(xmap=0, n0=(0, 4), ahead=4, stamp=None, verbose=False):
    A = Asm()
    if stamp: stamp(A, 0)
    emit_setup(A, xmap)
    A(f"s_cmp_ge_u32 s{sWAVE}, 8\ns_cbranch_scc1 L_loader")
    if n0: touch_addrs(A, xmap)
    emit_srds(A); srd_dbg(A)
    if n0:
        A(f"s_add_u32 s{sT0}, s{sWAVE}, {n0[0]}\ns_cmp_ge_u32 s{sT0}, {n0[1]}\ns_cbranch_scc1 L_t0")
        touch(A, sT0, xmap)
        A.label("L_t0")
    clear_flags(A)
    A(f"s_cmp_eq_u32 s{sBR}, 0\ns_cbranch_scc1 L_preB")
    stage_wphi(A)
    A("s_branch L_pre")
    A.label("L_preB")
    masks(A)
    A.label("L_pre")
    compute_addrs(A)
    def hook(A, j, T):
        if n0 and j % 2 == 0 and T == 3:
            st = j//2 + ahead
            if st >= n0[1] and st < NST:
                A(f"s_cmp_lg_u32 s{sWAVE}, {st % 6}\ns_cbranch_scc1 L_th{j}\ns_mov_b32 s{sT0}, {st}")
                touch(A, sT0, xmap)
                A.label(f"L_th{j}")
    emit_gemm(A, None, hook)
    if stamp: stamp(A, 1)
    A(f"s_cmp_eq_u32 s{sBR}, 0\ns_cbranch_scc0 L_compA")
    compute_B(A)
    A("s_branch L_end")
    A.label("L_compA")
    compute_A(A)
    A("s_branch L_end")
    A.label("L_loader")
    A(f"s_setprio 1\ns_sub_u32 s{sWAVE}, s{sWAVE}, 8")
    loader_addrs(A)
    emit_srds(A); srd_dbg(A)
    emit_loader(A, 2)
    wait_group(A)
    A(f"s_cmp_eq_u32 s{sBR}, 0\ns_cbranch_scc0 L_loadA")
    loader_B(A)
    A("s_branch L_exit")
    A.label("L_loadA")
    loader_A(A)
    A("s_branch L_exit")
    A.label("L_end")
    if stamp: stamp(A, 2, final=True)
    A.label("L_exit")
    A("s_endpgm")
    return A.text(verbose=verbose)
if __name__ == "__main__":
    t = gen_k1(verbose=True)
    asm = f"; @launch grid=(256,1,1) block=(768,1,1) lds={LDS_K1}\n.amdgcn_target \"amdgcn-amd-amdhsa--gfx950\"\n" + kernel_block("k1_kernel", t, 168)
    open("k1.s", "w").write(asm)
    import os
    os.system("clang -x assembler -target amdgcn-amd-amdhsa -mcpu=gfx950 -c k1.s -o k1.o && python3 cdna_unwritten_srd_check.py k1.s; llvm-readelf -S k1.o | grep text")
```

```python
from asmgen import *
from gemm3 import LdsTrack
LDS_K2 = 153600
sWA, sWB_, sWS, sO = 4, 8, 12, 16
sWAVE, sRB, sCB, sKH, sRT = 20, 21, 22, 23, 24
sT0, sT1, sT2 = 25, 26, 27
sPTR = 36
def ptr(i): return sPTR + 2*i
vLANE = 1; t0, t1, t2, t3 = 2, 3, 4, 5
def gen_k2(stfl="sc1", stamp=None, verbose=False):
    A = Asm()
    if stamp: stamp(A, 0)
    A(f"""
    s_cmp_ge_u32 s2, 256
    s_cbranch_scc1 M_exit
    s_load_dwordx16 s[{sPTR}:{sPTR+15}], s[0:1], 0
    s_load_dwordx4 s[{sPTR+16}:{sPTR+19}], s[0:1], 64
    s_load_dwordx2 s[{sPTR+20}:{sPTR+21}], s[0:1], 80
    v_lshrrev_b32 v{t0}, 6, v0
    v_and_b32 v{vLANE}, 63, v0
    v_readfirstlane_b32 s{sWAVE}, v{t0}
    s_bfe_u32 s{sRB}, s2, 0x20001
    s_lshl_b32 s{sRB}, s{sRB}, 3
    s_bfe_u32 s{sT0}, s2, 0x30003
    s_add_u32 s{sRB}, s{sRB}, s{sT0}
    s_and_b32 s{sCB}, s2, 1
    s_lshl_b32 s{sCB}, s{sCB}, 2
    s_lshr_b32 s{sT0}, s2, 6
    s_add_u32 s{sCB}, s{sCB}, s{sT0}
    s_cmp_ge_u32 s{sWAVE}, 8
    s_cbranch_scc1 M_loader
    """)
    vOm, vOr, vWm, vWr, vST = 6, 7, 8, 9, 10
    vOF = 12
    vWF = 92
    vAC = 132
    A(f"""
    s_lshr_b32 s{sKH}, s{sWAVE}, 2
    s_and_b32 s{sRT}, s{sWAVE}, 3
    s_and_b32 s{sT0}, s{sRT}, 1
    s_lshl_b32 s{sT0}, s{sT0}, 4
    v_and_b32 v{t0}, 15, v{vLANE}
    v_add_u32 v{t0}, s{sT0}, v{t0}
    v_lshrrev_b32 v{t1}, 4, v{vLANE}
    v_lshlrev_b32 v{t2}, 9, v{t1}
    v_lshl_add_u32 v{vOm}, v{t0}, 4, v{t2}
    v_lshrrev_b32 v{t2}, 5, v{vLANE}
    v_bfe_u32 v{t3}, v{vLANE}, 4, 1
    v_mul_u32_u24 v{vOr}, 5120, v{t2}
    v_lshl_add_u32 v{vOr}, v{t3}, 8, v{vOr}
    v_lshl_add_u32 v{vOr}, v{t0}, 3, v{vOr}
    v_add_u32 v{vOr}, 2048, v{vOr}
    s_lshl_b32 s{sT0}, s{sRB}, 1
    s_lshr_b32 s{sT1}, s{sRT}, 1
    s_add_u32 s{sT0}, s{sT0}, s{sT1}
    s_mul_i32 s{sT0}, s{sT0}, 81920
    s_mul_i32 s{sT1}, s{sKH}, 10240
    s_add_u32 s{sT2}, s{sT0}, s{sT1}
    s_waitcnt lgkmcnt(0)
    s_mov_b32 s{sWS}, s{ptr(10)}
    s_mov_b32 s{sWS+1}, s{ptr(10)+1}
    s_mov_b32 s{sWS+2}, {64*81920}
    s_mov_b32 s{sWS+3}, 0x20000
    """)
    def oloads(H):
        L = []
        for q in range(4):
            if q % 2 == 0: L.append(f"s_add_u32 s{sT0}, s{sT2}, {H*20480 + q*2560}")
            L.append(f"buffer_load_dwordx4 {vr(vOF+20*H+4*q,4)}, v{vOm}, s[{sWS}:{sWS+3}], s{sT0} offen offset:{(q%2)*2560}")
        L.append(f"s_add_u32 s{sT0}, s{sT2}, {H*20480}")
        for e in range(2):
            L.append(f"buffer_load_dwordx2 {vr(vOF+20*H+16+2*e,2)}, v{vOr}, s[{sWS}:{sWS+3}], s{sT0} offen offset:{e*2560}")
        return L
    for l in oloads(0) + oloads(1): A(l)
    A(f"""
    s_mov_b32 s{sO}, s{ptr(8)}
    s_mov_b32 s{sO+1}, s{ptr(8)+1}
    s_mov_b32 s{sO+2}, {2048*1280}
    s_mov_b32 s{sO+3}, 0x20000
    v_bfe_u32 v{t0}, v{vLANE}, 2, 2
    v_lshl_add_u32 v{t0}, v{t3}, 2, v{t0}
    v_mad_u32_u24 v{t1}, v{t2}, 24, v{t0}
    v_mul_u32_u24 v{t1}, 160, v{t1}
    v_and_b32 v{vST}, 3, v{vLANE}
    s_mul_i32 s{sT1}, s{sKH}, 25600
    v_lshl_add_u32 v{vST}, v{vST}, 3, s{sT1}
    v_add_u32 v{vWm}, v{vST}, v{t1}
    v_mul_u32_u24 v{t1}, 80, v{t2}
    v_add3_u32 v{t1}, v{t1}, v{t0}, 16
    v_mul_u32_u24 v{t1}, 160, v{t1}
    v_add_u32 v{vWr}, v{vST}, v{t1}
    """)
    K = LdsTrack(A)
    def rdw(n, T):
        q = n % 5; f = vWF + 20*(n % 2) + 4*T
        out = []
        for e in range(2):
            if q < 4: out.append(f"ds_read_b64_tr_b16 {vr(f+2*e,2)}, v{vWm} offset:{(40*q+8*e)*160 + 32*T}")
            else: out.append(f"ds_read_b64_tr_b16 {vr(f+2*e,2)}, v{vWr} offset:{40*e*160 + 32*T}")
        return out
    for H in range(4):
        if H:
            d = 51200 if H < 3 else -102400
            A(f"v_add_u32 v{vWm}, {d}, v{vWm}\nv_add_u32 v{vWr}, {d}, v{vWr}")
        A("s_barrier")
        for T in range(5):
            for l in rdw(5*H, T): K.issue(l, (5*H, T))
        if H + 2 < 4:
            for l in oloads(H+2): A(l)
        A(f"s_waitcnt vmcnt({12 if H < 2 else (6 if H == 2 else 0)})")
        for q in range(5):
            n = 5*H + q
            for T in range(5):
                if q < 4:
                    for l in rdw(n+1, T): K.issue(l, (n+1, T))
                K.need({(n, T)})
                acc = vr(vAC+4*T, 4)
                A(f"v_mfma_f32_16x16x32_bf16 {acc}, {vr(vWF+20*(n%2)+4*T,4)}, {vr(vOF+20*H+4*q,4)}, {acc if n else 0}")
    A(f"""
    s_mul_i32 s{sT0}, s{sWAVE}, 3072
    s_add_u32 s{sT0}, s{sT0}, 51200
    s_xor_b32 s{sT1}, s{sWAVE}, 4
    s_mul_i32 s{sT1}, s{sT1}, 3072
    s_add_u32 s{sT1}, s{sT1}, 51200
    v_lshlrev_b32 v{t0}, 4, v{vLANE}
    v_add_u32 v{t1}, s{sT1}, v{t0}
    v_add_u32 v{t0}, s{sT0}, v{t0}
    s_lshl_b32 s{sT0}, s{sRB}, 2
    s_add_u32 s{sT0}, s{sT0}, s{sRT}
    s_mul_i32 s{sT0}, s{sT0}, {16*1280}
    s_mul_i32 s{sT1}, s{sCB}, 160
    s_add_u32 s{sT0}, s{sT0}, s{sT1}
    v_and_b32 v{vST}, 15, v{vLANE}
    v_mul_u32_u24 v{vST}, 1280, v{vST}
    v_lshrrev_b32 v{vOm}, 4, v{vLANE}
    v_lshl_add_u32 v{vOm}, v{vOm}, 3, v{vST}
    v_lshl_add_u32 v{vST}, v{t3}, 5, v{vST}
    v_lshl_add_u32 v{vST}, v{t2}, 4, v{vST}
    s_cmp_eq_u32 s{sKH}, 0
    s_cbranch_scc0 M_k1
    """)
    def fin(keep, give, coff):
        for i, T in enumerate(give): A(f"ds_write_b128 v{t0}, {vr(vAC+4*T,4)} offset:{1024*i}")
        A("s_waitcnt lgkmcnt(0)\ns_barrier")
        for i, T in enumerate(keep): A(f"ds_read_b128 {vr(12+4*i,4)}, v{t1} offset:{1024*i}")
        for i, T in enumerate(keep):
            A(f"s_waitcnt lgkmcnt({len(keep)-1-i})")
            for q in range(2): A(f"v_pk_add_f32 {vr(12+4*i+2*q,2)}, {vr(12+4*i+2*q,2)}, {vr(vAC+4*T+2*q,2)}")
            for q in range(2): A(f"v_cvt_pk_bf16_f32 v{28+2*i+q}, v{12+4*i+2*q}, v{12+4*i+2*q+1}")
        for q in range(2): A(f"v_permlane16_swap_b32 v{28+q}, v{30+q}")
        A(f"buffer_store_dwordx4 v[28:31], v{vST}, s[{sO}:{sO+3}], s{sT0} offen offset:{coff} {stfl}")
        if len(keep) == 3: A(f"buffer_store_dwordx2 v[32:33], v{vOm}, s[{sO}:{sO+3}], s{sT0} offen offset:128 {stfl}")
    fin([0, 1, 4], [2, 3], 0)
    A("s_branch M_end")
    A.label("M_k1")
    fin([2, 3], [0, 1, 4], 64)
    A("s_branch M_end")
    A.label("M_loader")
    vWO = 6
    A(f"""
    s_setprio 1
    s_sub_u32 s{sWAVE}, s{sWAVE}, 8
    s_lshl_b32 s{sT0}, s{sWAVE}, 6
    s_mul_i32 s{sT1}, s{sCB}, 160
    v_add_u32 v{t0}, s{sT0}, v{vLANE}
    """)
    for m in range(5):
        A(f"""
        v_add_u32 v{t1}, {256*m}, v{t0}
        v_mul_u32_u24 v{t2}, 6554, v{t1}
        v_lshrrev_b32 v{t2}, 16, v{t2}
        v_mul_u32_u24 v{t2}, {1280-160}, v{t2}
        v_lshl_add_u32 v{t2}, v{t1}, 4, v{t2}
        v_add_u32 v{vWO+m}, s{sT1}, v{t2}
        """)
    A(f"""
    s_lshl_b32 s{sT2}, s{sWAVE}, 10
    s_waitcnt lgkmcnt(0)
    s_mov_b32 s{sWA}, s{ptr(3)}
    s_mov_b32 s{sWA+1}, s{ptr(3)+1}
    s_mov_b32 s{sWA+2}, {640*1280}
    s_mov_b32 s{sWA+3}, 0x20000
    s_mov_b32 s{sWB_}, s{ptr(6)}
    s_mov_b32 s{sWB_+1}, s{ptr(6)+1}
    s_mov_b32 s{sWB_+2}, {640*1280}
    s_mov_b32 s{sWB_+3}, 0x20000
    """)
    def dma(m):
        srd = sWA if m < 25 else sWB_
        if m % 5 == 0: A(f"s_mov_b32 s{sT0}, {((m // 5) % 5)*128*1280}")
        if m == 37:
            A(f"s_add_u32 s{sT1}, s{sT2}, {148*1024}\ns_sub_u32 m0, s{sT2}, 2048\ns_cmp_lt_u32 s{sWAVE}, 2\ns_cselect_b32 m0, s{sT1}, m0")
        else:
            A(f"s_add_u32 m0, s{sT2}, {((4*m) if m < 37 else (4*m - 150))*1024}")
        A(f"buffer_load_dwordx4 v{vWO + m % 5}, s[{srd}:{srd+3}], s{sT0} offen lds")
    need = [13, 25, 38, 50]
    upto = [20, 33, 46, 50]
    m = 0
    for H in range(4):
        while m < upto[H]: dma(m); m += 1
        A(f"s_waitcnt vmcnt({m - need[H]})\ns_barrier")
    A("s_branch M_exit")
    A.label("M_end")
    if stamp: stamp(A, 1, final=True)
    A.label("M_exit")
    A("s_endpgm")
    return A.text(verbose=verbose)
if __name__ == "__main__":
    t = gen_k2(verbose=True)
    asm = f"; @launch grid=(256,1,1) block=(768,1,1) lds={LDS_K2}\n.amdgcn_target \"amdgcn-amd-amdhsa--gfx950\"\n" + kernel_block("k2_kernel", t, 168)
    open("k2.s", "w").write(asm)
    import os
    os.system("clang -x assembler -target amdgcn-amd-amdhsa -mcpu=gfx950 -c k2.s -o k2.o && python3 cdna_unwritten_srd_check.py k2.s; llvm-readelf -S k2.o | grep text")
```

```python
import sys
from asmgen import kernel_block
import k1, k2
NAME = "gated_mix__linear_kernel_hedgehog__sliding_block__prompt"
def build(k1kw={}, k2kw={}, extra_launch=""):
    hdr = f"""; gated mix of hedgehog linear attention and sliding-window attention (generated by hand-written generator scripts)
; @launch kernel={NAME}_kernel grid=(256,1,1) block=(768,1,1) lds={k1.LDS_K1}
; @launch kernel=outproj_kernel grid=(256,1,1) block=(768,1,1) lds={k2.LDS_K2}
{extra_launch}.amdgcn_target "amdgcn-amd-amdhsa--gfx950"
"""
    return hdr + kernel_block(NAME + "_kernel", k1.gen_k1(**k1kw), 168) + kernel_block("outproj_kernel", k2.gen_k2(**k2kw), 168)
if __name__ == "__main__":
    out = sys.argv[1] if len(sys.argv) > 1 else f"cdna_kernels/{NAME}.s"
    open(out, "w").write(build())
```

```python
from gemm3 import *
import math, struct
def f32(x): return hex(struct.unpack("<I", struct.pack("<f", x))[0])
LOG2E = 1.4426950408889634
OB  = 0x000000
KVB = 0x600000
KVP = 0xC00000
FLB = 0xE00000
FLA = 0xE10000
WS_BYTES = 0x1000000
RBS = 12288
WPHI = LDS_GEMM_END
LDS_K1 = WPHI + 2048
NB = WB
sD = 60
sA0, sA1, sA2, sA3 = 64, 65, 66, 67
sCNT = 68
sSPIN = 69
sLO = 70
sOB = 72
sFL = 73
sC0 = 74
SPIN_MAX = 1 << 20
PREG = {c: 20 + 2*c for c in range(10)}
PREG.update({10: 40, 13: 42, 11: 44, 14: 46, 12: 48})
vONE = 50
vGL = 52
vG1 = 53
vMD, vMF = 132, 148

ST = [None]
def st(A, i, **kw):
    if ST[0]: ST[0](A, i, **kw)
def srd_dbg(A):
    A(f"""
    s_mov_b32 s{sD}, s{ptr(9)}
    s_mov_b32 s{sD+1}, s{ptr(9)+1}
    s_mov_b32 s{sD+2}, 256
    s_mov_b32 s{sD+3}, 0x20000
    s_mov_b32 s{sLO}, -1
    s_mov_b32 s{sLO+1}, 0
    """)
def flag_off(A, dst):
    A(f"""
    s_lshl_b32 s{sA0}, s{sP}, 3
    s_add_u32 s{sA0}, s{sA0}, s{sR}
    s_lshl_b32 s{sA1}, s{sA0}, 7
    s_add_u32 s{sA1}, s{sA1}, {FLB}
    s_lshl_b32 s{sA0}, s{sA0}, 4
    s_add_u32 s{sA0}, s{sA0}, {FLA}
    s_cmp_eq_u32 s{sBR}, 0
    s_cselect_b32 s{dst}, s{sA1}, s{sA0}
    """)
def clear_flags(A):
    A(f"s_cmp_lg_u32 s{sWAVE}, 7\ns_cbranch_scc1 L_noclear")
    flag_off(A, sFL)
    A(f"""
    v_lshlrev_b32 v{t0}, 2, v{vLANE}
    v_mov_b32 v{t1}, 0
    s_mov_b64 exec, 15
    buffer_store_dword v{t1}, v{t0}, s[{sWS}:{sWS+3}], s{sFL} offen sc1
    s_lshl_b32 s{sA0}, s{sBR}, 4
    s_add_u32 s{sA0}, s{sA0}, s{sP}
    s_lshl_b32 s{sA0}, s{sA0}, 2
    s_mov_b64 exec, 1
    v_mov_b32 v{t1}, 1
    s_waitcnt vmcnt(0)
    buffer_atomic_add v{t1}, v{t0}, s[{sD}:{sD+3}], s{sA0} offen sc1
    s_mov_b64 exec, -1
    """)
    A.label("L_noclear")
def poll(A, name, srd, voff, soff, want, lanes, vd):
    m = (1 << lanes) - 1
    A(f"s_mov_b32 s{sSPIN}, {SPIN_MAX}")
    A(f"s_mov_b32 exec_lo, {hex(m & 0xffffffff)}\ns_mov_b32 exec_hi, {hex(m >> 32)}")
    A.label(name)
    A(f"""
    buffer_load_dword v{vd}, v{voff}, s[{srd}:{srd+3}], s{soff} offen sc1
    s_sub_u32 s{sSPIN}, s{sSPIN}, 1
    s_cbranch_scc1 {name}_out
    s_waitcnt vmcnt(0)
    v_cmp_ne_u32 vcc, {want}, v{vd}
    s_cbranch_vccnz {name}
    """)
    A.label(name + "_out")
    A("s_waitcnt vmcnt(0)\ns_mov_b64 exec, -1")

def masks(A):
    BIG = 2.0**100
    A(f"""
    v_and_b32 v{t0}, 31, v{vLANE}
    v_lshrrev_b32 v{t1}, 5, v{vLANE}
    v_lshlrev_b32 v{t1}, 2, v{t1}
    v_sub_u32 v{t0}, v{t0}, v{t1}
    v_cvt_f32_i32 v{t0}, v{t0}
    v_mul_f32 v{t0}, {f32(BIG)}, v{t0}
    """)
    for i in range(16):
        c = 8*(i//4) + i % 4
        A(f"""
        v_add_f32 v{vMD+i}, {f32(-c*BIG) if c else 0}, v{t0}
        v_sub_f32 v{vMF+i}, {f32((c-1)*BIG) if c != 1 else 0}, v{t0}
        v_min_f32 v{vMD+i}, 0, v{vMD+i}
        v_min_f32 v{vMF+i}, 0, v{vMF+i}
        """)

def pack(A, order, scale):
    for T in order:
        a0 = vACC + 8*T
        sc = scale.get(T)
        if sc is not None:
            src = f"s[{sC0}:{sC0+1}]" if sc == "s" else vr(sc, 2)
            for q in range(4): A(f"v_pk_mul_f32 {vr(a0+2*q,2)}, {vr(a0+2*q,2)}, {src}")
        if T < 7:
            d, s = PREG[2*T], PREG[2*T+1]
            for j in range(2):
                A(f"v_cvt_pk_bf16_f32 v{d+j}, v{a0+2*j}, v{a0+2*j+1}")
                A(f"v_cvt_pk_bf16_f32 v{s+j}, v{a0+4+2*j}, v{a0+4+2*j+1}")
            A("#swap16 " + f"{d} {s}")
        else:
            A(f"#swap7")
def finish_pack(A):
    out = []; pend = []
    for l in A.lines:
        if l.startswith("#swap16"):
            _, d, s = l.split(); d = int(d); s = int(s)
            out += pend
            pend = [f"v_permlane16_swap_b32 v{d+j}, v{s+j}" for j in range(2)]
        elif l.startswith("#swap7"):
            a0 = vACC + 56
            out += [f"v_permlane16_swap_b32 v{a0+i}, v{a0+4+i}" for i in range(4)]
            out += pend; pend = []
            out += [f"v_cvt_pk_bf16_f32 v{PREG[14]+j}, v{a0+2*j}, v{a0+2*j+1}" for j in range(2)]
        elif l.startswith("#flush"):
            out += pend; pend = []
        else: out.append(l)
    assert not pend
    A.lines = out
def v_rows(A, base_off):
    for j in range(2):
        A(f"v_permlane32_swap_b32 v{PREG[10]+j}, v{PREG[13]+j}")
        A(f"v_permlane32_swap_b32 v{PREG[11]+j}, v{PREG[14]+j}")
    A(f"""
    v_mul_u32_u24 v{t0}, 48, v{vLANE}
    v_add_u32 v{t0}, s{sM0X}, v{t0}
    """)
    for x in range(3): A(f"ds_write_b128 v{t0}, {vr(40+4*x,4)} offset:{base_off+16*x}")
def gate(A, sign):
    A(f"""
    v_mul_f32 v{vGL}, {f32(-sign*LOG2E)}, v{vACC+60}
    v_exp_f32 v{vGL}, v{vGL}
    v_add_f32 v{vGL}, 1.0, v{vGL}
    v_rcp_f32 v{vGL}, v{vGL}
    """)
def vslot_addr(A, dst0, dst1, hmul, tmpbase=None):
    A(f"""
    v_lshrrev_b32 v{t0}, 5, v{vLANE}
    v_bfe_u32 v{t1}, v{vLANE}, 2, 2
    v_mad_u32_u24 v{t0}, v{t0}, {hmul}, v{t1}
    v_mul_u32_u24 v{t0}, 48, v{t0}
    v_bfe_u32 v{t1}, v{vLANE}, 4, 1
    v_and_b32 v{t2}, 3, v{vLANE}
    v_lshl_add_u32 v{t2}, v{t1}, 2, v{t2}
    v_min_u32 v{t3}, 5, v{t2}
    v_lshl_add_u32 v{dst0}, v{t3}, 3, v{t0}
    v_xor_b32 v{t2}, v{t1}, v{t2}
    v_min_u32 v{t3}, 5, v{t2}
    v_lshl_add_u32 v{dst1}, v{t3}, 3, v{t0}
    v_add_u32 v{dst1}, 1536, v{dst1}
    """)

vQ0, vQ0r, vQ1, vQ1r = 20, 24, 26, 54
vKm, vKr = 56, 60
vO = [68, 84]; vS = 100; vPk = 116; vV = 124
vL16, vL8, vVA = 6, 7, 8
vAK, vAR, vAV = 10, 11, 12
def attn_tile(A, hd, cmask, oinit, stride):
    Q, Qr, O = (vQ0, vQ0r, vO[0]) if hd == 0 else (vQ1, vQ1r, vO[1])
    S = vr(vS, 16)
    A("s_waitcnt lgkmcnt(0)")
    A(f"v_mfma_f32_32x32x16_bf16 {S}, {vr(vKm,4)}, {vr(Q,4)}, {vr(cmask,16) if cmask else 0}")
    A(f"v_mfma_f32_32x32x8_bf16 {S}, {vr(vKr,2)}, {vr(Qr,2)}, {S}")
    for a in range(2):
        for e in range(2):
            A(f"ds_read_b64_tr_b16 {vr(vV+4*a+2*e,2)}, v{vAV} offset:{2560 + (16*a+8*e)*48}")
    A(f"""
    v_add_u32 v{vAK}, {stride}, v{vAK}
    v_add_u32 v{vAR}, {stride}, v{vAR}
    v_add_u32 v{vAV}, {stride}, v{vAV}
    ds_read_b128 {vr(vKm,4)}, v{vAK} offset:{1024*hd}
    ds_read_b64 {vr(vKr,2)}, v{vAR} offset:2048
    """)
    for a in range(2):
        for i in range(8):
            A(f"v_exp_f32 v{vS+8*a+i}, v{vS+8*a+i}")
            if i >= 3 and i % 2 == 1: A(f"v_cvt_pk_bf16_f32 v{vPk+4*a+(i-3)//2}, v{vS+8*a+i-3}, v{vS+8*a+i-2}")
            if a == 1 and i == 0: A(f"v_cvt_pk_bf16_f32 v{vPk+3}, v{vS+6}, v{vS+7}")
            if a == 1 and i == 2:
                A("s_waitcnt lgkmcnt(2)")
                A(f"v_mfma_f32_32x32x16_bf16 {vr(O,16)}, {vr(vV,4)}, {vr(vPk,4)}, {0 if oinit else vr(O,16)}")
    A(f"s_sub_u32 s{sCNT}, s{sCNT}, 1")
    A(f"v_cvt_pk_bf16_f32 v{vPk+7}, v{vS+14}, v{vS+15}")
    A(f"v_mfma_f32_32x32x16_bf16 {vr(O,16)}, {vr(vV+4,4)}, {vr(vPk+4,4)}, {vr(O,16)}")
def attn_call(A, name, hd, sbase, stride, cmask, oinit):
    A(f"""
    v_add_u32 v{vAK}, s{sbase}, v{vL16}
    v_add_u32 v{vAR}, s{sbase}, v{vL8}
    v_add_u32 v{vAV}, s{sbase}, v{vVA+hd}
    ds_read_b128 {vr(vKm,4)}, v{vAK} offset:{1024*hd}
    ds_read_b64 {vr(vKr,2)}, v{vAR} offset:2048
    """)
    attn_tile(A, hd, cmask, oinit, stride)
    A(f"s_cbranch_scc1 {name}_done")
    A.label(name)
    attn_tile(A, hd, None, False, stride)
    A(f"s_cbranch_scc0 {name}")
    A.label(name + "_done")
def o_finish(A, O, g, eps, dst):
    if eps: A(f"v_add_f32 v{O+12}, {f32(eps)}, v{O+12}")
    A(f"v_rcp_f32 v{O+12}, v{O+12}")
    A(f"v_mul_f32 v{O+12}, v{g}, v{O+12}")
    for q in range(6): A(f"v_pk_mul_f32 {vr(O+2*q,2)}, {vr(O+2*q,2)}, {vr(O+12,2)} op_sel_hi:[1,0]")
    for q in range(6): A(f"v_cvt_pk_bf16_f32 v{dst+q}, v{O+2*q}, v{O+2*q+1}")

def compute_B(A):
    c = 20**-0.5 * LOG2E
    A(f"""
    s_mov_b32 s{sC0}, {f32(c)}
    s_mov_b32 s{sC0+1}, {f32(c)}
    v_bfe_u32 v{t0}, v{vLANE}, 4, 1
    v_cmp_eq_u32 vcc, 0, v{t0}
    v_mov_b32 v{t0}, s{sC0}
    v_mov_b32 v{vONE}, 0x3f803f80
    v_mov_b32 v{vONE+1}, 0x3f803f80
    v_cndmask_b32 v{t2}, 1.0, v{t0}, vcc
    v_cndmask_b32 v{t3}, 1.0, v{t0}, vcc
    v_lshlrev_b32 v{vL16}, 4, v{vLANE}
    v_lshlrev_b32 v{vL8}, 3, v{vLANE}
    """)
    pack(A, [2, 3, 4, 5, 6, 7, 1, 0], {0: "s", 1: "s", 2: t2})
    A("#flush"); finish_pack(A)
    gate(A, -1)
    A(f"""
    v_add_u32 v{vAK}, s{sM0X}, v{vL16}
    v_add_u32 v{vAR}, s{sM0X}, v{vL8}
    ds_write_b128 v{vAK}, {vr(PREG[5],4)}
    ds_write_b128 v{vAK}, {vr(PREG[8],4)} offset:1024
    ds_write_b64 v{vAR}, {vr(PREG[7],2)} offset:2048
    """)
    v_rows(A, 2560)
    A(f"""
    ds_write_b128 v{vAK}, {vr(PREG[3],4)} offset:5632
    ds_write_b64 v{vAR}, {vr(PREG[2],2)} offset:6656
    ds_write_b32 v{vAR}, v{vGL} offset:7168
    """)
    vslot_addr(A, vVA, vVA+1, 4)
    A(f"""
    s_sub_u32 s{sA1}, 7, s{sWAVE}
    s_mul_i32 s{sA2}, s{sA1}, {RBS}
    v_add_u32 v{t0}, s{sA2}, v{vL16}
    v_add_u32 v{t1}, s{sA2}, v{vL8}
    s_waitcnt lgkmcnt(0)
    s_mov_b32 exec_lo, 0
    v_mov_b32 v{vQ0r}, 0
    v_mov_b32 v{vQ0r+1}, 0
    s_mov_b32 exec_lo, -1
    """)
    st(A, 3)
    A("s_barrier")
    st(A, 4)
    A(f"""
    ds_read_b128 {vr(vQ1,4)}, v{t0} offset:5632
    ds_read_b64 {vr(vQ1r,2)}, v{t1} offset:6656
    ds_read_b32 v{vG1}, v{t1} offset:7168
    s_mov_b32 s{sCNT}, s{sWAVE}
    """)
    attn_call(A, "L_at0", 0, sM0X, -RBS, vMD, True)
    A(f"""
    s_mov_b32 exec_hi, 0
    v_mov_b32 v{vQ1r}, 0
    v_mov_b32 v{vQ1r+1}, 0
    s_mov_b32 exec_hi, -1
    s_mov_b32 s{sCNT}, s{sA1}
    """)
    attn_call(A, "L_at1", 1, sA2, -RBS, vMD, True)
    st(A, 5)
    A(f"""
    s_cmp_eq_u32 s{sR}, 0
    s_cbranch_scc1 L_at_end
    s_mul_i32 s{sA2}, s{sA1}, 5632
    s_add_u32 s{sA2}, s{sA2}, {NB}
    s_mov_b32 s{sCNT}, s{sWAVE}
    s_barrier
    """)
    st(A, 6)
    attn_call(A, "L_at2", 1, sA2, 5632, vMF, False)
    A(f"""
    s_mul_i32 s{sA2}, s{sWAVE}, 5632
    s_add_u32 s{sA2}, s{sA2}, {NB}
    s_mov_b32 s{sCNT}, s{sA1}
    """)
    attn_call(A, "L_at3", 0, sA2, 5632, vMF, False)
    A.label("L_at_end")
    st(A, 7)
    A(f"""
    s_lshl_b32 s{sA0}, s{sR}, 3
    s_add_u32 s{sA2}, s{sA0}, s{sA1}
    s_add_u32 s{sA0}, s{sA0}, s{sWAVE}
    s_mul_i32 s{sA0}, s{sA0}, 81920
    s_mul_i32 s{sA2}, s{sA2}, 81920
    s_add_u32 s{sA3}, s{sP}, 16
    s_mul_i32 s{sA3}, s{sA3}, 2560
    s_add_u32 s{sA0}, s{sA0}, s{sA3}
    s_add_u32 s{sA2}, s{sA2}, s{sA3}
    s_waitcnt lgkmcnt(0)
    """)
    o_finish(A, vO[1], vG1, 0, 30)
    A(f"""
    buffer_store_dwordx4 {vr(30,4)}, v{vL16}, s[{sWS}:{sWS+3}], s{sA2} offen offset:1024 sc1
    s_mov_b32 exec_lo, 0
    buffer_store_dwordx2 {vr(34,2)}, v{vL8}, s[{sWS}:{sWS+3}], s{sA2} offen offset:2048 sc1
    s_mov_b32 exec_lo, -1
    """)
    o_finish(A, vO[0], vGL, 0, 36)
    A(f"""
    buffer_store_dwordx4 {vr(36,4)}, v{vL16}, s[{sWS}:{sWS+3}], s{sA0} offen sc1
    s_mov_b32 exec_hi, 0
    buffer_store_dwordx2 {vr(40,2)}, v{vL8}, s[{sWS}:{sWS+3}], s{sA0} offen offset:2048 sc1
    s_mov_b32 exec_hi, -1
    """)

def wait_group(A):
    A(f"""
    s_lshl_b32 s{sA0}, s{sBR}, 4
    s_add_u32 s{sA0}, s{sA0}, s{sP}
    s_lshl_b32 s{sA0}, s{sA0}, 2
    v_mov_b32 v{t0}, 0
    """)
    poll(A, "L_grp", sD, t0, sA0, 8, 1, t1)
    flag_off(A, sFL)
def set_flag(A):
    A(f"""
    s_lshl_b32 s{sA0}, s{sWAVE}, 2
    v_mov_b32 v{t0}, s{sA0}
    v_mov_b32 v{t1}, 1
    s_mov_b64 exec, 1
    s_waitcnt vmcnt(0)
    buffer_store_dword v{t1}, v{t0}, s[{sWS}:{sWS+3}], s{sFL} offen sc1
    s_mov_b64 exec, -1
    """)
def loader_B(A):
    A(f"""
    v_lshlrev_b32 v{vL16}, 4, v{vLANE}
    v_add_u32 v{t2}, s{sM0X}, v{vL16}
    s_lshl_b32 s{sA1}, s{sP}, 3
    s_add_u32 s{sA1}, s{sA1}, s{sR}
    s_lshl_b32 s{sA1}, s{sA1}, 2
    s_add_u32 s{sA1}, s{sA1}, s{sWAVE}
    s_mul_i32 s{sA1}, s{sA1}, 11264
    s_add_u32 s{sA1}, s{sA1}, {KVB}
    s_barrier
    s_cmp_eq_u32 s{sR}, 7
    s_cbranch_scc1 L_nopub
    """)
    st(A, 4)
    for b in range(2):
        for q in range(6): A(f"ds_read_b128 {vr(20+24*b+4*q,4)}, v{t2} offset:{b*RBS + q*1024}")
    for b in range(2):
        for q in range(6):
            off = b*5632 + q*1024
            if off % 4096 < 1024 or q == 0: A(f"s_add_u32 s{sA2}, s{sA1}, {off & ~4095}")
            A(f"s_waitcnt lgkmcnt({11 - (6*b+q)})")
            if q == 5: A("s_mov_b32 exec_hi, 0")
            A(f"buffer_store_dwordx4 {vr(20+24*b+4*q,4)}, v{vL16}, s[{sWS}:{sWS+3}], s{sA2} offen offset:{off & 4095} sc1")
            if q == 5: A("s_mov_b32 exec_hi, -1")
    set_flag(A)
    A.label("L_nopub")
    st(A, 5)
    A(f"""
    s_cmp_eq_u32 s{sR}, 0
    s_cbranch_scc1 L_end
    s_lshl_b32 s{sA0}, s{sWAVE}, 2
    v_mov_b32 v{t0}, s{sA0}
    s_sub_u32 s{sA2}, s{sFL}, 128
    """)
    poll(A, "L_pollB", sWS, t0, sA2, 1, 1, t1)
    st(A, 6)
    A(f"""
    s_sub_u32 s{sA1}, s{sA1}, {4*11264}
    s_mul_i32 s{sA2}, s{sWAVE}, 11264
    s_add_u32 s{sA2}, s{sA2}, {NB}
    """)
    for q in range(11):
        if q % 4 == 0:
            A(f"s_add_u32 m0, s{sA2}, {q*1024}\ns_add_u32 s{sA3}, s{sA1}, {q*1024}")
        A(f"buffer_load_dwordx4 v{vL16}, s[{sWS}:{sWS+3}], s{sA3} offen offset:{(q % 4)*1024} sc1 lds")
    A("s_waitcnt vmcnt(0)")
    st(A, 7)
    A("s_barrier")

vWm = [132, 136]; vW1 = [140, 144]; vWr = [148, 150]; vW1r = 152
vF = [68, 84]; vF1 = 100
vPH = [116, 54]
def wphi_operands(A):
    A(f"""
    v_lshrrev_b32 v{t0}, 5, v{vLANE}
    v_bfe_u32 v{t1}, v{vLANE}, 2, 2
    v_lshl_add_u32 v{t2}, v{t0}, 2, v{t1}
    v_mul_u32_u24 v{t2}, 40, v{t2}
    v_add_u32 v{t2}, {WPHI}, v{t2}
    v_bfe_u32 v{t3}, v{vLANE}, 4, 1
    v_bfe_u32 v{t1}, v{vLANE}, 1, 1
    v_lshl_add_u32 v{t3}, v{t3}, 1, v{t1}
    v_lshl_add_u32 v{t3}, v{t3}, 3, v{t2}
    """)
    for hd in range(2):
        for e in range(2):
            off = hd*800 + 4*(hd + 2*e)*40
            A(f"ds_read_b64_tr_b16 {vr(vWm[hd]+2*e,2)}, v{t3} offset:{off}")
            A(f"ds_read_b64_tr_b16 {vr(vW1[hd]+2*e,2)}, v{t2} offset:{off+32}")
    A(f"ds_read_b64_tr_b16 {vr(vWr[0],2)}, v{t3} offset:640")
    A(f"ds_read_b64_tr_b16 {vr(vW1r,2)}, v{t2} offset:{640+32}")
    A(f"""
    v_bfe_i32 v{t1}, v{vLANE}, 2, 1
    v_and_b32 v{t1}, 0x80008000, v{t1}
    v_bfe_i32 v{t2}, v{vLANE}, 3, 1
    v_bfe_i32 v{t3}, v{vLANE}, 5, 1
    v_xor_b32 v{t0}, v{t2}, v{t3}
    s_waitcnt lgkmcnt(0)
    """)
    for q in range(4):
        for hd in range(2):
            A(f"v_xor_b32 v{vWm[hd]+q}, v{t1}, v{vWm[hd]+q}")
            A(f"v_bitop3_b32 v{vW1[hd]+q}, v{vW1[hd]+q}, v{t1}, v{t2} bitop3:{'0x28' if hd else '0x14'}")
    for q in range(2):
        A(f"v_bitop3_b32 v{vWr[1]+q}, v{vWr[0]+q}, v{t1}, v{t3} bitop3:0x28")
        A(f"v_bitop3_b32 v{vWr[0]+q}, v{vWr[0]+q}, v{t1}, v{t3} bitop3:0x14")
        A(f"v_bitop3_b32 v{vW1r+q}, v{vW1r+q}, v{t1}, v{t0} bitop3:0x14")
def features(A, c0):
    m = [PREG[c0], PREG[c0+3]]; rem = PREG[c0+2]
    A(f"v_mfma_f32_32x32x16_bf16 {vr(vF[0],16)}, {vr(vWm[0],4)}, {vr(m[0],4)}, 0")
    A(f"v_mfma_f32_32x32x8_bf16 {vr(vF[0],16)}, {vr(vWr[0],2)}, {vr(rem,2)}, {vr(vF[0],16)}")
    A(f"v_mfma_f32_32x32x16_bf16 {vr(vF1,16)}, {vr(vW1[0],4)}, {vr(m[0],4)}, 0")
    A(f"v_mfma_f32_32x32x16_bf16 {vr(vF1,16)}, {vr(vW1[1],4)}, {vr(m[1],4)}, {vr(vF1,16)}")
    A(f"v_mfma_f32_32x32x8_bf16 {vr(vF1,16)}, {vr(vW1r,2)}, {vr(rem,2)}, {vr(vF1,16)}")
    A(f"v_mfma_f32_32x32x16_bf16 {vr(vF[1],16)}, {vr(vWm[1],4)}, {vr(m[1],4)}, 0")
    A(f"v_mfma_f32_32x32x8_bf16 {vr(vF[1],16)}, {vr(vWr[1],2)}, {vr(rem,2)}, {vr(vF[1],16)}")
    for hd in range(2):
        R = [vF[hd]+i for i in range(16)] + [vF1+4*hd+i for i in range(4)]
        A(f"v_max3_f32 v{t0}, v{R[0]}, v{R[1]}, v{R[2]}")
        A(f"v_max3_f32 v{t1}, v{R[3]}, v{R[4]}, v{R[5]}")
        for q in range(3):
            A(f"v_max3_f32 v{t0}, v{R[6+4*q]}, v{R[7+4*q]}, v{t0}")
            A(f"v_max3_f32 v{t1}, v{R[8+4*q]}, v{R[9+4*q]}, v{t1}")
        A(f"v_max3_f32 v{t0}, v{R[18]}, v{R[19]}, v{t0}")
        A(f"v_max_f32 v{t0}, v{t0}, v{t1}")
        for q in range(10):
            A(f"v_pk_add_f32 {vr(R[2*q],2)}, {vr(R[2*q],2)}, {vr(t0,2)} op_sel_hi:[1,0] neg_lo:[0,1] neg_hi:[0,1]")
        for q in range(10):
            A(f"v_exp_f32 v{R[2*q]}, v{R[2*q]}")
            A(f"v_exp_f32 v{R[2*q+1]}, v{R[2*q+1]}")
            if q == 2: A(f"v_pk_add_f32 {vr(t2,2)}, {vr(R[0],2)}, {vr(R[2],2)}")
            if q > 2: A(f"v_pk_add_f32 {vr(t2,2)}, {vr(t2,2)}, {vr(R[2*q-2],2)}")
        A(f"v_pk_add_f32 {vr(t2,2)}, {vr(t2,2)}, {vr(R[18],2)}")
        A(f"v_add_f32 v{t2}, v{t2}, v{t3}")
        A(f"v_rcp_f32 v{t2}, v{t2}")
        for q in range(10):
            A(f"v_pk_mul_f32 {vr(R[2*q],2)}, {vr(R[2*q],2)}, {vr(t2,2)} op_sel_hi:[1,0]")
        for q in range(10):
            A(f"v_cvt_pk_bf16_f32 v{vPH[hd]+q}, v{R[2*q]}, v{R[2*q+1]}")
        if c0 == 5:
            A(f"ds_write_b128 v{vAK}, {vr(vPH[hd],4)} offset:{3072+2048*hd}")
            A(f"ds_write_b128 v{vAV}, {vr(vPH[hd]+4,4)} offset:{3072+2048*hd}")
            A(f"ds_write_b64 v{vAR}, {vr(vPH[hd]+8,2)} offset:{7168+512*hd}")
def compute_A(A):
    A(f"""
    s_mov_b32 s{sC0}, {f32(LOG2E)}
    s_mov_b32 s{sC0+1}, {f32(LOG2E)}
    v_mov_b32 v{vONE}, 0x3f803f80
    v_mov_b32 v{vONE+1}, 0x3f803f80
    v_lshlrev_b32 v{vL16}, 4, v{vLANE}
    v_lshlrev_b32 v{vL8}, 3, v{vLANE}
    """)
    wphi_operands(A)
    pack(A, [2, 3, 4, 5, 6, 7, 1, 0], {T: "s" for T in range(5)})
    A("#flush"); finish_pack(A)
    gate(A, 1)
    v_rows(A, 0)
    A(f"""
    v_and_b32 v{t0}, 31, v{vLANE}
    v_lshrrev_b32 v{t1}, 5, v{vLANE}
    v_bfe_u32 v{t2}, v{vLANE}, 1, 2
    v_lshlrev_b32 v{t3}, 1, v{t1}
    v_xor_b32 v{t2}, v{t2}, v{t3}
    v_lshlrev_b32 v{t2}, 4, v{t2}
    v_lshl_add_u32 v{t2}, v{t0}, 6, v{t2}
    v_add_u32 v{vAK}, s{sM0X}, v{t2}
    v_xor_b32 v{vAV}, 16, v{vAK}
    v_lshlrev_b32 v{t1}, 3, v{t1}
    v_lshl_add_u32 v{t1}, v{t0}, 4, v{t1}
    v_add_u32 v{vAR}, s{sM0X}, v{t1}
    """)
    st(A, 3)
    features(A, 5)
    A("s_waitcnt lgkmcnt(0)")
    st(A, 4)
    A("s_barrier")
    features(A, 0)
    st(A, 5)
    A(f"""
    s_lshl_b32 s{sA0}, s{sR}, 3
    s_add_u32 s{sA0}, s{sA0}, s{sWAVE}
    s_mul_i32 s{sA0}, s{sA0}, 81920
    s_mul_i32 s{sA3}, s{sP}, 2560
    s_add_u32 s{sA0}, s{sA0}, s{sA3}
    v_add_u32 v{t0}, {WB}, v{vL16}
    v_add_u32 v{t1}, {WB}, v{vL8}
    s_barrier
    """)
    st(A, 6)
    op = [20, 30]
    for hd in range(2):
        A(f"ds_read_b128 {vr(op[hd],4)}, v{t0} offset:{2560*hd}")
        A(f"ds_read_b128 {vr(op[hd]+4,4)}, v{t0} offset:{2560*hd+1024}")
        A(f"ds_read_b64 {vr(op[hd]+8,2)}, v{t1} offset:{2560*hd+2048}")
    for hd in range(2):
        O = vr(vF[hd], 16)
        A(f"s_waitcnt lgkmcnt({3-3*hd})")
        A(f"v_mfma_f32_32x32x16_bf16 {O}, {vr(op[hd],4)}, {vr(vPH[hd],4)}, 0")
        A(f"v_mfma_f32_32x32x16_bf16 {O}, {vr(op[hd]+4,4)}, {vr(vPH[hd]+4,4)}, {O}")
        A(f"v_mfma_f32_32x32x8_bf16 {O}, {vr(op[hd]+8,2)}, {vr(vPH[hd]+8,2)}, {O}")
    o_finish(A, vF[0], vGL, 1e-6, 100)
    A(f"buffer_store_dwordx4 {vr(100,4)}, v{vL16}, s[{sWS}:{sWS+3}], s{sA0} offen sc1")
    o_finish(A, vF[1], vGL, 1e-6, 106)
    A(f"""
    buffer_store_dwordx4 {vr(106,4)}, v{vL16}, s[{sWS}:{sWS+3}], s{sA0} offen offset:1024 sc1
    v_cndmask_b32 v112, v110, v104, s[{sLO}:{sLO+1}]
    v_cndmask_b32 v113, v111, v105, s[{sLO}:{sLO+1}]
    buffer_store_dwordx2 {vr(112,2)}, v{vL8}, s[{sWS}:{sWS+3}], s{sA0} offen offset:2048 sc1
    """)
def stage_wphi(A):
    A(f"""
    s_cmp_lg_u32 s{sWAVE}, 6
    s_cbranch_scc1 L_nophi
    s_mul_i32 s{sA0}, s{sP}, 1600
    s_add_u32 s{sG}, s{ptr(2)}, s{sA0}
    s_addc_u32 s{sG+1}, s{ptr(2)+1}, 0
    s_mov_b32 s{sG+2}, 1600
    s_mov_b32 s{sG+3}, 0x20000
    s_mov_b32 m0, {WPHI}
    v_lshlrev_b32 v{t0}, 4, v{vLANE}
    buffer_load_dwordx4 v{t0}, s[{sG}:{sG+3}], 0 offen lds
    buffer_load_dwordx4 v{t0}, s[{sG}:{sG+3}], 0 offen offset:1024 lds
    s_waitcnt vmcnt(0)
    """)
    A.label("L_nophi")
def loader_A(A):
    vAa = 8
    vB = 12
    vslot_addr(A, vB, vB+1, 8)
    A(f"""
    s_and_b32 s{sA1}, s{sWAVE}, 1
    s_lshr_b32 s{sA2}, s{sWAVE}, 1
    s_cmp_eq_u32 s{sA1}, 0
    s_cselect_b64 vcc, -1, 0
    v_lshlrev_b32 v{vL16}, 4, v{vLANE}
    v_lshlrev_b32 v{vL8}, 3, v{vLANE}
    v_cndmask_b32 v{vB}, v{vB+1}, v{vB}, vcc
    v_lshrrev_b32 v{t0}, 5, v{vLANE}
    v_bfe_u32 v{t1}, v{vLANE}, 2, 2
    v_lshl_add_u32 v{t0}, v{t0}, 3, v{t1}
    s_cmp_eq_u32 s{sA2}, 0
    s_cbranch_scc0 L_kv_t1
    """)
    A(f"""
    s_lshl_b32 s{sA0}, s{sA1}, 11
    s_add_u32 s{sA0}, s{sA0}, 3072
    v_and_b32 v{t1}, 1, v{vLANE}
    v_bfe_u32 v{t2}, v{vLANE}, 4, 1
    v_lshl_add_u32 v{t1}, v{t1}, 1, v{t2}
    v_bfe_u32 v{t2}, v{vLANE}, 3, 1
    v_xor_b32 v{t1}, v{t1}, v{t2}
    v_lshlrev_b32 v{t1}, 4, v{t1}
    v_lshl_add_u32 v{t1}, v{t0}, 6, v{t1}
    v_bfe_u32 v{t2}, v{vLANE}, 1, 1
    v_lshl_add_u32 v{t1}, v{t2}, 3, v{t1}
    v_add_u32 v{vAa}, s{sA0}, v{t1}
    v_xor_b32 v{vAa+1}, 32, v{vAa}
    v_add_u32 v{vAa+1}, 256, v{vAa+1}
    v_add_u32 v{vAa+2}, 1024, v{vAa}
    v_add_u32 v{vAa+3}, 1024, v{vAa+1}
    s_branch L_kv_go
    """)
    A.label("L_kv_t1")
    A(f"""
    s_lshl_b32 s{sA0}, s{sA1}, 9
    s_add_u32 s{sA0}, s{sA0}, 7168
    v_and_b32 v{t1}, 1, v{vLANE}
    v_lshlrev_b32 v{t1}, 3, v{t1}
    v_lshl_add_u32 v{t1}, v{t0}, 4, v{t1}
    v_add_u32 v{vAa}, s{sA0}, v{t1}
    v_add_u32 v{vAa+1}, 64, v{vAa}
    v_add_u32 v{vAa+2}, 256, v{vAa}
    v_add_u32 v{vAa+3}, 320, v{vAa}
    """)
    A.label("L_kv_go")
    A(f"""
    s_lshl_b32 s{sA0}, s{sP}, 3
    s_add_u32 s{sA0}, s{sA0}, s{sR}
    s_mul_i32 s{sA0}, s{sA0}, 10240
    s_mul_i32 s{sA3}, s{sA1}, 5120
    s_add_u32 s{sA3}, s{sA3}, {KVP}
    s_add_u32 s{sOB}, s{sA0}, s{sA3}
    s_barrier
    """)
    st(A, 3)
    ACC = 20; FR = 36
    K = LdsTrack(A)
    def rd(n):
        blk, a = n // 2, n % 2
        if n == 8:
            for q in range(5): A(f"v_add_u32 v{vAa+q}, {4*RBS}, v{vAa+q}")
        f = FR + 8*(n % 4)
        for e in range(2):
            K.issue(f"ds_read_b64_tr_b16 {vr(f+2*e,2)}, v{vAa+2*a+e} offset:{(blk % 4)*RBS}", n)
            K.issue(f"ds_read_b64_tr_b16 {vr(f+4+2*e,2)}, v{vB} offset:{(blk % 4)*RBS + (16*a+4*e)*48}", n)
    for n in range(3): rd(n)
    for n in range(16):
        K.need({n})
        f = FR + 8*(n % 4)
        A(f"v_mfma_f32_32x32x16_bf16 {vr(ACC,16)}, {vr(f,4)}, {vr(f+4,4)}, {vr(ACC,16) if n else 0}")
        if n + 3 < 16: rd(n+3)
    A(f"""
    s_cmp_eq_u32 s{sA2}, 0
    s_cbranch_scc1 L_kv_s0
    s_add_u32 s{sA0}, s{sOB}, 4096
    buffer_store_dwordx4 {vr(ACC,4)}, v{vL16}, s[{sWS}:{sWS+3}], s{sA0} offen sc1
    s_branch L_kv_s1
    """)
    A.label("L_kv_s0")
    for q in range(4): A(f"buffer_store_dwordx4 {vr(ACC+4*q,4)}, v{vL16}, s[{sWS}:{sWS+3}], s{sOB} offen offset:{1024*q} sc1")
    A.label("L_kv_s1")
    st(A, 4)
    set_flag(A)
    st(A, 5)
    A(f"""
    v_lshlrev_b32 v{t0}, 2, v{vLANE}
    s_and_b32 s{sA0}, s{sFL}, 0xffffff80
    """)
    poll(A, "L_pollA", sWS, t0, sA0, 1, 32, t1)
    st(A, 6)
    A(f"""
    s_mul_i32 s{sA0}, s{sP}, {8*10240}
    s_add_u32 s{sA0}, s{sA0}, s{sA3}
    s_lshl_b32 s{sA3}, s{sA2}, 11
    s_add_u32 s{sA0}, s{sA0}, s{sA3}
    s_mul_i32 s{sA1}, s{sA1}, 2560
    s_lshl_b32 s{sA3}, s{sA2}, 10
    s_add_u32 s{sA1}, s{sA1}, s{sA3}
    s_add_u32 s{sA1}, s{sA1}, {WB}
    v_add_u32 v{t2}, s{sA1}, v{vL16}
    v_add_u32 v{t3}, s{sA1}, v{vL8}
    s_mov_b32 s{sA3}, s{sA0}
    """)
    D = 20
    for rr in range(8):
        for q in range(2): A(f"buffer_load_dwordx4 {vr(D+8*rr+4*q,4)}, v{vL16}, s[{sWS}:{sWS+3}], s{sA3} offen offset:{1024*q} sc1")
        if rr < 7: A(f"s_add_u32 s{sA3}, s{sA3}, 10240")
    A(f"s_cmp_eq_u32 s{sA2}, 0\ns_cbranch_scc1 L_kv_r0")
    E = 84
    for rr in range(8):
        A(f"buffer_load_dwordx4 {vr(E+4*rr,4)}, v{vL16}, s[{sWS}:{sWS+3}], s{sA0} offen offset:2048 sc1")
        if rr < 7: A(f"s_add_u32 s{sA0}, s{sA0}, 10240")
    A("s_waitcnt vmcnt(0)")
    for rr in range(1, 8):
        for q in range(2): A(f"v_pk_add_f32 {vr(E+2*q,2)}, {vr(E+2*q,2)}, {vr(E+4*rr+2*q,2)}")
    for q in range(2): A(f"v_cvt_pk_bf16_f32 v{E+q}, v{E+2*q}, v{E+2*q+1}")
    A(f"ds_write_b64 v{t3}, {vr(E,2)} offset:1024")
    A.label("L_kv_r0")
    A("s_waitcnt vmcnt(0)")
    for rr in range(1, 8):
        for q in range(4): A(f"v_pk_add_f32 {vr(D+2*q,2)}, {vr(D+2*q,2)}, {vr(D+8*rr+2*q,2)}")
    for q in range(4): A(f"v_cvt_pk_bf16_f32 v{D+q}, v{D+2*q}, v{D+2*q+1}")
    A(f"ds_write_b128 v{t2}, {vr(D,4)}")
    A("s_waitcnt lgkmcnt(0)")
    st(A, 7)
    A("s_barrier")

def gen_k1(xmap=0, n0=(0, 4), ahead=4, stamp=None, verbose=False):
    A = Asm()
    ST[0] = stamp
    st(A, 0, nowait=True)
    emit_setup(A, xmap)
    A(f"s_cmp_ge_u32 s{sWAVE}, 8\ns_cbranch_scc1 L_loader")
    if n0: touch_addrs(A, xmap)
    emit_srds(A); srd_dbg(A)
    if n0:
        A(f"s_add_u32 s{sT0}, s{sWAVE}, {n0[0]}\ns_cmp_ge_u32 s{sT0}, {n0[1]}\ns_cbranch_scc1 L_t0")
        touch(A, sT0, xmap)
        A.label("L_t0")
    clear_flags(A)
    A(f"s_cmp_eq_u32 s{sBR}, 0\ns_cbranch_scc1 L_preB")
    stage_wphi(A)
    A("s_branch L_pre")
    A.label("L_preB")
    masks(A)
    A.label("L_pre")
    compute_addrs(A)
    def hook(A, j, T):
        if n0 and j % 2 == 0 and T == 3:
            st = j//2 + ahead
            if st >= n0[1] and st < NST:
                A(f"s_cmp_lg_u32 s{sWAVE}, {st % 6}\ns_cbranch_scc1 L_th{j}\ns_mov_b32 s{sT0}, {st}")
                touch(A, sT0, xmap)
                A.label(f"L_th{j}")
    emit_gemm(A, (lambda A, i: st(A, 1) if i == 1 else None), hook)
    st(A, 2)
    A(f"s_cmp_eq_u32 s{sBR}, 0\ns_cbranch_scc0 L_compA")
    compute_B(A)
    A("s_branch L_end")
    A.label("L_compA")
    compute_A(A)
    A("s_branch L_end")
    A.label("L_loader")
    A(f"s_setprio 1\ns_sub_u32 s{sWAVE}, s{sWAVE}, 8")
    loader_addrs(A)
    emit_srds(A); srd_dbg(A)
    emit_loader(A, 2)
    st(A, 1)
    wait_group(A)
    st(A, 2)
    A(f"s_cmp_eq_u32 s{sBR}, 0\ns_cbranch_scc0 L_loadA")
    loader_B(A)
    A("s_branch L_end")
    A.label("L_loadA")
    loader_A(A)
    A.label("L_end")
    st(A, 8, final=True)
    A.label("L_exit")
    A("s_endpgm")
    return A.text(verbose=verbose)
if __name__ == "__main__":
    t = gen_k1(verbose=True)
    asm = f"; @launch grid=(256,1,1) block=(768,1,1) lds={LDS_K1}\n.amdgcn_target \"amdgcn-amd-amdhsa--gfx950\"\n" + kernel_block("k1_kernel", t, 168)
    open("k1.s", "w").write(asm)
    import os
    os.system("clang -x assembler -target amdgcn-amd-amdhsa -mcpu=gfx950 -c k1.s -o k1.o && python3 cdna_unwritten_srd_check.py k1.s; llvm-readelf -S k1.o | grep text")
```

```python
from asmgen import *
from gemm3 import LdsTrack
LDS_K2 = 153600
sWA, sWB_, sWS, sO = 4, 8, 12, 16
sWAVE, sRB, sCB, sKH, sRT = 20, 21, 22, 23, 24
sT0, sT1, sT2 = 25, 26, 27
sPTR = 36
def ptr(i): return sPTR + 2*i
vLANE = 1; t0, t1, t2, t3 = 2, 3, 4, 5
def gen_k2(stfl="sc1", stamp=None, verbose=False):
    A = Asm()
    if stamp: stamp(A, 0, nowait=True)
    A(f"""
    s_cmp_ge_u32 s2, 256
    s_cbranch_scc1 M_exit
    s_load_dwordx16 s[{sPTR}:{sPTR+15}], s[0:1], 0
    s_load_dwordx4 s[{sPTR+16}:{sPTR+19}], s[0:1], 64
    s_load_dwordx2 s[{sPTR+20}:{sPTR+21}], s[0:1], 80
    v_lshrrev_b32 v{t0}, 6, v0
    v_and_b32 v{vLANE}, 63, v0
    v_readfirstlane_b32 s{sWAVE}, v{t0}
    s_bfe_u32 s{sRB}, s2, 0x20001
    s_lshl_b32 s{sRB}, s{sRB}, 3
    s_bfe_u32 s{sT0}, s2, 0x30003
    s_add_u32 s{sRB}, s{sRB}, s{sT0}
    s_and_b32 s{sCB}, s2, 1
    s_lshl_b32 s{sCB}, s{sCB}, 2
    s_lshr_b32 s{sT0}, s2, 6
    s_add_u32 s{sCB}, s{sCB}, s{sT0}
    s_cmp_ge_u32 s{sWAVE}, 8
    s_cbranch_scc1 M_loader
    """)
    vOm, vOr, vWm, vWr, vST = 6, 7, 8, 9, 10
    vOF = 12
    vWF = 92
    vAC = 132
    A(f"""
    s_lshr_b32 s{sKH}, s{sWAVE}, 2
    s_and_b32 s{sRT}, s{sWAVE}, 3
    s_and_b32 s{sT0}, s{sRT}, 1
    s_lshl_b32 s{sT0}, s{sT0}, 4
    v_and_b32 v{t0}, 15, v{vLANE}
    v_add_u32 v{t0}, s{sT0}, v{t0}
    v_lshrrev_b32 v{t1}, 4, v{vLANE}
    v_lshlrev_b32 v{t2}, 9, v{t1}
    v_lshl_add_u32 v{vOm}, v{t0}, 4, v{t2}
    v_lshrrev_b32 v{t2}, 5, v{vLANE}
    v_bfe_u32 v{t3}, v{vLANE}, 4, 1
    v_mul_u32_u24 v{vOr}, 5120, v{t2}
    v_lshl_add_u32 v{vOr}, v{t3}, 8, v{vOr}
    v_lshl_add_u32 v{vOr}, v{t0}, 3, v{vOr}
    v_add_u32 v{vOr}, 2048, v{vOr}
    s_lshl_b32 s{sT0}, s{sRB}, 1
    s_lshr_b32 s{sT1}, s{sRT}, 1
    s_add_u32 s{sT0}, s{sT0}, s{sT1}
    s_mul_i32 s{sT0}, s{sT0}, 81920
    s_mul_i32 s{sT1}, s{sKH}, 10240
    s_add_u32 s{sT2}, s{sT0}, s{sT1}
    s_waitcnt lgkmcnt(0)
    s_mov_b32 s{sWS}, s{ptr(10)}
    s_mov_b32 s{sWS+1}, s{ptr(10)+1}
    s_mov_b32 s{sWS+2}, {64*81920}
    s_mov_b32 s{sWS+3}, 0x20000
    """)
    def oloads(H):
        L = []
        for q in range(4):
            if q % 2 == 0: L.append(f"s_add_u32 s{sT0}, s{sT2}, {H*20480 + q*2560}")
            L.append(f"buffer_load_dwordx4 {vr(vOF+20*H+4*q,4)}, v{vOm}, s[{sWS}:{sWS+3}], s{sT0} offen offset:{(q%2)*2560}")
        L.append(f"s_add_u32 s{sT0}, s{sT2}, {H*20480}")
        for e in range(2):
            L.append(f"buffer_load_dwordx2 {vr(vOF+20*H+16+2*e,2)}, v{vOr}, s[{sWS}:{sWS+3}], s{sT0} offen offset:{e*2560}")
        return L
    for l in oloads(0) + oloads(1): A(l)
    A(f"""
    s_mov_b32 s{sO}, s{ptr(8)}
    s_mov_b32 s{sO+1}, s{ptr(8)+1}
    s_mov_b32 s{sO+2}, {2048*1280}
    s_mov_b32 s{sO+3}, 0x20000
    v_bfe_u32 v{t0}, v{vLANE}, 2, 2
    v_lshl_add_u32 v{t0}, v{t3}, 2, v{t0}
    v_mad_u32_u24 v{t1}, v{t2}, 24, v{t0}
    v_mul_u32_u24 v{t1}, 160, v{t1}
    v_and_b32 v{vST}, 3, v{vLANE}
    s_mul_i32 s{sT1}, s{sKH}, 25600
    v_lshl_add_u32 v{vST}, v{vST}, 3, s{sT1}
    v_add_u32 v{vWm}, v{vST}, v{t1}
    v_mul_u32_u24 v{t1}, 80, v{t2}
    v_add3_u32 v{t1}, v{t1}, v{t0}, 16
    v_mul_u32_u24 v{t1}, 160, v{t1}
    v_add_u32 v{vWr}, v{vST}, v{t1}
    """)
    K = LdsTrack(A)
    def rdw(n, T):
        q = n % 5; f = vWF + 20*(n % 2) + 4*T
        out = []
        for e in range(2):
            if q < 4: out.append(f"ds_read_b64_tr_b16 {vr(f+2*e,2)}, v{vWm} offset:{(40*q+8*e)*160 + 32*T}")
            else: out.append(f"ds_read_b64_tr_b16 {vr(f+2*e,2)}, v{vWr} offset:{40*e*160 + 32*T}")
        return out
    for H in range(4):
        if H:
            d = 51200 if H < 3 else -102400
            A(f"v_add_u32 v{vWm}, {d}, v{vWm}\nv_add_u32 v{vWr}, {d}, v{vWr}")
        A("s_barrier")
        if stamp: stamp(A, 1+H)
        for T in range(5):
            for l in rdw(5*H, T): K.issue(l, (5*H, T))
        if H + 2 < 4:
            for l in oloads(H+2): A(l)
        A(f"s_waitcnt vmcnt({12 if H < 2 else (6 if H == 2 else 0)})")
        for q in range(5):
            n = 5*H + q
            for T in range(5):
                if q < 4:
                    for l in rdw(n+1, T): K.issue(l, (n+1, T))
                K.need({(n, T)})
                acc = vr(vAC+4*T, 4)
                A(f"v_mfma_f32_16x16x32_bf16 {acc}, {vr(vWF+20*(n%2)+4*T,4)}, {vr(vOF+20*H+4*q,4)}, {acc if n else 0}")
    if stamp: stamp(A, 5)
    A(f"""
    s_mul_i32 s{sT0}, s{sWAVE}, 3072
    s_add_u32 s{sT0}, s{sT0}, 51200
    s_xor_b32 s{sT1}, s{sWAVE}, 4
    s_mul_i32 s{sT1}, s{sT1}, 3072
    s_add_u32 s{sT1}, s{sT1}, 51200
    v_lshlrev_b32 v{t0}, 4, v{vLANE}
    v_add_u32 v{t1}, s{sT1}, v{t0}
    v_add_u32 v{t0}, s{sT0}, v{t0}
    s_lshl_b32 s{sT0}, s{sRB}, 2
    s_add_u32 s{sT0}, s{sT0}, s{sRT}
    s_mul_i32 s{sT0}, s{sT0}, {16*1280}
    s_mul_i32 s{sT1}, s{sCB}, 160
    s_add_u32 s{sT0}, s{sT0}, s{sT1}
    v_and_b32 v{vST}, 15, v{vLANE}
    v_mul_u32_u24 v{vST}, 1280, v{vST}
    v_lshrrev_b32 v{vOm}, 4, v{vLANE}
    v_lshl_add_u32 v{vOm}, v{vOm}, 3, v{vST}
    v_lshl_add_u32 v{vST}, v{t3}, 5, v{vST}
    v_lshl_add_u32 v{vST}, v{t2}, 4, v{vST}
    s_cmp_eq_u32 s{sKH}, 0
    s_cbranch_scc0 M_k1
    """)
    def fin(keep, give, coff):
        for i, T in enumerate(give): A(f"ds_write_b128 v{t0}, {vr(vAC+4*T,4)} offset:{1024*i}")
        A("s_waitcnt lgkmcnt(0)\ns_barrier")
        for i, T in enumerate(keep): A(f"ds_read_b128 {vr(12+4*i,4)}, v{t1} offset:{1024*i}")
        for i, T in enumerate(keep):
            A(f"s_waitcnt lgkmcnt({len(keep)-1-i})")
            for q in range(2): A(f"v_pk_add_f32 {vr(12+4*i+2*q,2)}, {vr(12+4*i+2*q,2)}, {vr(vAC+4*T+2*q,2)}")
            for q in range(2): A(f"v_cvt_pk_bf16_f32 v{28+2*i+q}, v{12+4*i+2*q}, v{12+4*i+2*q+1}")
        for q in range(2): A(f"v_permlane16_swap_b32 v{28+q}, v{30+q}")
        A(f"buffer_store_dwordx4 v[28:31], v{vST}, s[{sO}:{sO+3}], s{sT0} offen offset:{coff} {stfl}")
        if len(keep) == 3: A(f"buffer_store_dwordx2 v[32:33], v{vOm}, s[{sO}:{sO+3}], s{sT0} offen offset:128 {stfl}")
    fin([0, 1, 4], [2, 3], 0)
    A("s_branch M_end")
    A.label("M_k1")
    fin([2, 3], [0, 1, 4], 64)
    A("s_branch M_end")
    A.label("M_loader")
    vWO = 6
    A(f"""
    s_setprio 1
    s_sub_u32 s{sWAVE}, s{sWAVE}, 8
    s_lshl_b32 s{sT0}, s{sWAVE}, 6
    s_mul_i32 s{sT1}, s{sCB}, 160
    v_add_u32 v{t0}, s{sT0}, v{vLANE}
    """)
    for m in range(5):
        A(f"""
        v_add_u32 v{t1}, {256*m}, v{t0}
        v_mul_u32_u24 v{t2}, 6554, v{t1}
        v_lshrrev_b32 v{t2}, 16, v{t2}
        v_mul_u32_u24 v{t2}, {1280-160}, v{t2}
        v_lshl_add_u32 v{t2}, v{t1}, 4, v{t2}
        v_add_u32 v{vWO+m}, s{sT1}, v{t2}
        """)
    A(f"""
    s_lshl_b32 s{sT2}, s{sWAVE}, 10
    s_waitcnt lgkmcnt(0)
    s_mov_b32 s{sWA}, s{ptr(3)}
    s_mov_b32 s{sWA+1}, s{ptr(3)+1}
    s_mov_b32 s{sWA+2}, {640*1280}
    s_mov_b32 s{sWA+3}, 0x20000
    s_mov_b32 s{sWB_}, s{ptr(6)}
    s_mov_b32 s{sWB_+1}, s{ptr(6)+1}
    s_mov_b32 s{sWB_+2}, {640*1280}
    s_mov_b32 s{sWB_+3}, 0x20000
    """)
    def dma(m):
        srd = sWA if m < 25 else sWB_
        if m % 5 == 0: A(f"s_mov_b32 s{sT0}, {((m // 5) % 5)*128*1280}")
        if m == 37:
            A(f"s_add_u32 s{sT1}, s{sT2}, {148*1024}\ns_sub_u32 m0, s{sT2}, 2048\ns_cmp_lt_u32 s{sWAVE}, 2\ns_cselect_b32 m0, s{sT1}, m0")
        else:
            A(f"s_add_u32 m0, s{sT2}, {((4*m) if m < 37 else (4*m - 150))*1024}")
        A(f"buffer_load_dwordx4 v{vWO + m % 5}, s[{srd}:{srd+3}], s{sT0} offen lds")
    need = [13, 25, 38, 50]
    upto = [20, 33, 46, 50]
    m = 0
    for H in range(4):
        while m < upto[H]: dma(m); m += 1
        A(f"s_waitcnt vmcnt({m - need[H]})\ns_barrier")
    A("s_branch M_exit")
    A.label("M_end")
    if stamp: stamp(A, 8, final=True)
    A.label("M_exit")
    A("s_endpgm")
    return A.text(verbose=verbose)
if __name__ == "__main__":
    t = gen_k2(verbose=True)
    asm = f"; @launch grid=(256,1,1) block=(768,1,1) lds={LDS_K2}\n.amdgcn_target \"amdgcn-amd-amdhsa--gfx950\"\n" + kernel_block("k2_kernel", t, 168)
    open("k2.s", "w").write(asm)
    import os
    os.system("clang -x assembler -target amdgcn-amd-amdhsa -mcpu=gfx950 -c k2.s -o k2.o && python3 cdna_unwritten_srd_check.py k2.s; llvm-readelf -S k2.o | grep text")
```

```python
import sys
import build as B
sST = 78
def mkstamp(base):
    def stamp(A, i, final=False, nowait=False):
        if i == 0:
            for q in range(9): A(f"s_mov_b32 s{sST+2*q}, 0")
        if final: A("s_waitcnt vmcnt(0)")
        A(f"s_memrealtime s[{sST+2*i}:{sST+2*i+1}]")
        if not nowait: A("s_waitcnt lgkmcnt(0)")
        if final:
            A(f"""
            s_mov_b32 s12, s56
            s_mov_b32 s13, s57
            s_mov_b32 s14, 0x10000000
            s_mov_b32 s15, 0x20000
            v_lshrrev_b32 v2, 6, v0
            s_mul_i32 s24, s2, 12
            v_add_u32 v2, s24, v2
            v_lshlrev_b32 v2, 6, v2
            s_mov_b32 s24, {base}
            """)
            for q in range(9):
                A(f"v_mov_b32 v3, s{sST+2*q}\nbuffer_store_dword v3, v2, s[12:15], s24 offen offset:{4*q}")
    return stamp
def gen(k1kw={}, k2kw={}):
    return B.build(dict(k1kw, stamp=mkstamp(0x4000000)), dict(k2kw, stamp=mkstamp(0x4100000)))
if __name__ == "__main__":
    import os
    if not os.path.exists("/dev/kfd"):
        open("prof.s", "w").write(gen())
        os.system("python3 cdna_unwritten_srd_check.py prof.s"); sys.exit(0)
    from run import *
    from gemm3 import wgmap
    R = Runner(); d = inputs(0); R.set_inputs(d)
    R.load(gen())
    memset(R.ws, 0)
    print("time", R.time(8))
    s1 = d2h(R.ws.ptr + 0x4000000, np.uint32, 256*12*16).reshape(256, 12, 16)[:, :, :9].astype(np.int64)
    s2 = d2h(R.ws.ptr + 0x4100000, np.uint32, 256*12*16).reshape(256, 12, 16)[:, :8, :9].astype(np.int64)
    t0 = s1[:, :, 0].min()
    m = np.array([wgmap(w) for w in range(256)])
    heavy = np.isin(m[:, 1] % 8, [1, 3, 4, 6])
    def show(lbl, a):
        a = np.where(a == 0, np.nan, (a - t0)*10.0).reshape(-1, 9)
        print(f"{lbl:22s} med", np.nan_to_num(np.nanmedian(a, axis=0)).astype(int), " max", np.nan_to_num(np.nanmax(a, axis=0)).astype(int))
    import warnings; warnings.simplefilter("ignore")
    for br, nm in ((0, "B"), (1, "A")):
        for hv in (True, False):
            sel = (m[:, 0] == br) & (heavy == hv)
            show(f"{nm} heavy={hv} comp", s1[sel, :8]); show(f"{nm} heavy={hv} load", s1[sel, 8:])
    show("K2 comp", s2)
```

```python
import sys
import build as B, prof
from asmgen import *
def k3(baseA, idxA, baseB, idxB, mult, nw=12):
    A = Asm()
    A(f"""
    s_cmp_ge_u32 s2, 1
    s_cbranch_scc1 P_exit
    s_load_dwordx2 s[12:13], s[0:1], 80
    s_mov_b32 s14, 0x10000000
    s_mov_b32 s15, 0x20000
    v_mul_u32_u24 v1, {nw*64}, v0
    v_mov_b32 v2, -1
    v_mov_b32 v3, 0
    s_mov_b32 s20, {baseA + 4*idxA}
    s_mov_b32 s21, {baseB + 4*idxB}
    s_waitcnt lgkmcnt(0)
    """)
    for rnd in range(4):
        for w in range(8):
            A(f"buffer_load_dword v{10+w}, v1, s[12:15], s20 offen offset:{64*w}")
            A(f"buffer_load_dword v{20+w}, v1, s[12:15], s21 offen offset:{64*w}")
        A("s_waitcnt vmcnt(0)")
        for w in range(8):
            A(f"v_min_u32 v2, v2, v{10+w}\nv_max_u32 v3, v3, v{20+w}")
        A(f"v_add_u32 v1, {64*nw*64}, v1")
    A("s_mov_b32 s22, -1\ns_mov_b32 s23, 0")
    for l in range(64):
        A(f"v_readlane_b32 s24, v2, {l}\nv_readlane_b32 s25, v3, {l}\ns_nop 0\ns_min_u32 s22, s22, s24\ns_max_u32 s23, s23, s25")
    A(f"""
    s_sub_u32 s22, s23, s22
    s_min_u32 s22, s22, 10000
    s_mul_i32 s22, s22, {mult}
    s_memrealtime s[26:27]
    s_waitcnt lgkmcnt(0)
    P_spin:
    s_memrealtime s[28:29]
    s_waitcnt lgkmcnt(0)
    s_sub_u32 s28, s28, s26
    s_cmp_lt_u32 s28, s22
    s_cbranch_scc1 P_spin
    P_exit:
    s_endpgm
    """)
    return kernel_block("probe_kernel", A.text(), 32)
def gen(q, k1kw={}, k2kw={}):
    s = B.build(dict(k1kw, stamp=prof.mkstamp(0x4000000)), dict(k2kw, stamp=prof.mkstamp(0x4100000)), extra_launch="; @launch kernel=probe_kernel grid=(1,1,1) block=(64,1,1) lds=0\n")
    return s + k3(*q)
K1, K2 = 0x4000000, 0x4100000
if __name__ == "__main__":
    Q = [(K1,0,K2,8,0), (K1,0,K2,8,4), (K1,0,K1,1,4), (K1,0,K1,2,4), (K1,0,K1,8,4), (K2,0,K2,1,4)]
    for i, q in enumerate(Q):
        open(f"probe{i}.s", "w").write(gen(q))
```
